```python
import torch

def _softmax(x, axis=-1):
    return torch.softmax(x, dim=axis)

def _gelu(x):
    return torch.nn.functional.gelu(x, approximate='tanh')

def _silu(x):
    return torch.nn.functional.silu(x)

def _sigmoid(x):
    return torch.sigmoid(x)

def _layernorm(x, axis=-1, eps=1e-05):
    m = x.mean(dim=axis, keepdim=True)
    v = x.var(dim=axis, keepdim=True, unbiased=False)
    return (x - m) / torch.sqrt(v + eps)

def _scatter_add(tgt, idx, src, axis=0):
    return tgt.clone().index_add_(axis, idx, src)

def _segment_sum(src, seg, n):
    out = torch.zeros((n,) + src.shape[1:], dtype=src.dtype)
    return out.index_add_(0, seg, src)

def _pad(x, pw):
    flat = tuple((v for pair in reversed(pw) for v in pair))
    return torch.nn.functional.pad(x, flat)
kernel_name = 'interleave_layers__spectral_gfnet__memory_aug_recurrent_mem_tr__prompt'

def setup_inputs():

    _w = lambda a: (lambda t: t.to(torch.bfloat16) if t.is_floating_point() else t)(torch.as_tensor(a))

    def _A_setup():
        B, S, D = (1, 2048, 512)
        Df = D // 2 + 1
        return {'x': _w((lambda *s: torch.randn(*s, dtype=torch.bfloat16) * 0.05)(B, S, D)), 'w_r': _w((lambda *s: torch.randn(*s, dtype=torch.bfloat16) * 0.4)(S, Df) * 0.02), 'w_i': _w((lambda *s: torch.randn(*s, dtype=torch.bfloat16) * 0.4)(S, Df) * 0.02)}
    _A_in = _A_setup()

    def _B_setup():
        B, S, Dm = (1, 2048, 512)
        H, Dh = (32, 128)
        M, seg = (8, 32)
        seg = min(seg, S)
        S = S // seg * seg
        return {'x': _w((lambda *s: torch.randn(*s, dtype=torch.bfloat16) * 0.05)(B, S, Dm)), 'mem0': _w((lambda *s: torch.randn(*s, dtype=torch.bfloat16) * 0.2)(B, M, Dm)), 'Wq': _w((lambda *s: torch.randn(*s, dtype=torch.bfloat16) * 1.6)(Dm, H, Dh) * Dm ** (-0.5)), 'Wk': _w((lambda *s: torch.randn(*s, dtype=torch.bfloat16) * 1.6)(Dm, H, Dh) * Dm ** (-0.5)), 'Wv': _w((lambda *s: torch.randn(*s, dtype=torch.bfloat16) * 0.2)(Dm, H, Dh) * Dm ** (-0.5)), 'Wo': _w((lambda *s: torch.randn(*s, dtype=torch.bfloat16) * 0.2)(H, Dh, Dm) * (H * Dh) ** (-0.5)), 'seg_len': seg}
    _B_in = _B_setup()
    return {'A_x': _A_in['x'], 'A_w_r': _A_in['w_r'], 'A_w_i': _A_in['w_i'], 'B_x': _B_in['x'], 'B_mem0': _B_in['mem0'], 'B_Wq': _B_in['Wq'], 'B_Wk': _B_in['Wk'], 'B_Wv': _B_in['Wv'], 'B_Wo': _B_in['Wo'], 'B_seg_len': _B_in['seg_len']}

def reference(A_x, A_w_r, A_w_i, B_x, B_mem0, B_Wq, B_Wk, B_Wv, B_Wo, B_seg_len):

    def _A_ref(x, w_r, w_i):
        B, S, D = x.shape
        X = (lambda x, axes=(-2, -1): torch.fft.rfft2(x.float(), dim=axes))(x, axes=(-2, -1))
        W = w_r + 1j * w_i
        X = X * W
        y = (lambda x, s, axes=(-2, -1): torch.fft.irfft2(x, s=s, dim=axes).to(torch.bfloat16))(X, (S, D), axes=(-2, -1))
        return y

    def _B_ref(x, mem0, Wq, Wk, Wv, Wo, seg_len):
        B, S, Dm = x.shape
        H, Dh = (Wq.shape[1], Wq.shape[2])
        M = mem0.shape[1]
        scale = Dh ** (-0.5)
        n_seg = S // seg_len
        L = M + seg_len
        idx = torch.arange(L)
        mask = (idx[:, None] < M) | (idx[:, None] >= idx[None, :])
        mem = mem0
        outs = []
        for s in range(n_seg):
            xs = x[:, s * seg_len:(s + 1) * seg_len, :].clone()
            h = torch.concatenate([mem, xs], axis=1)
            q = torch.einsum('btd,dhe->bhte', h, Wq)
            k = torch.einsum('btd,dhe->bhte', h, Wk)
            v = torch.einsum('btd,dhe->bhte', h, Wv)
            scores = torch.einsum('bhqe,bhke->bhqk', q, k) * scale
            scores = torch.where(mask[None, None], scores, -1000000000.0)
            p = _softmax(scores, axis=-1)
            o = torch.einsum('bhqk,bhke->bhqe', p, v)
            o = torch.einsum('bhte,hed->btd', o, Wo)
            mem = o[:, :M, :].clone()
            outs.append(o[:, M:, :])
        return torch.concatenate(outs, axis=1)
    x = A_x
    x = x + _A_ref(_layernorm(x, axis=-1), A_w_r, A_w_i)
    x = x + _B_ref(_layernorm(x, axis=-1), B_mem0, B_Wq, B_Wk, B_Wv, B_Wo, B_seg_len)
    x = x + _A_ref(_layernorm(x, axis=-1), A_w_r, A_w_i)
    x = x + _B_ref(_layernorm(x, axis=-1), B_mem0, B_Wq, B_Wk, B_Wv, B_Wo, B_seg_len)
    return x
```

```python
import re

def vr(b, n=1, p="v"):
    return f"{p}{b}" if n == 1 else f"{p}[{b}:{b+n-1}]"
def ar(b, n=1): return vr(b, n, "a")
def sr(b, n=1): return vr(b, n, "s")

_reg_re = re.compile(r"^(-|abs\()?\s*([vas])(?:(\d+)|\[(\d+):(\d+)\])\)?$")

def parse_reg(tok):
    tok = tok.strip()
    tok = tok.replace("|", "")
    m = _reg_re.match(tok)
    if m:
        k = m.group(2)
        if m.group(3) is not None:
            return [(k, int(m.group(3)))]
        return [(k, i) for i in range(int(m.group(4)), int(m.group(5)) + 1)]
    if tok == "vcc": return [("s", "vcc_lo"), ("s", "vcc_hi")]
    if tok in ("vcc_lo", "vcc_hi", "m0", "exec_lo", "exec_hi"): return [("s", tok)]
    if tok == "exec": return [("s", "exec_lo"), ("s", "exec_hi")]
    return []

def split_ops(s):
    out = []; depth = 0; cur = ""
    for ch in s:
        if ch in "[(": depth += 1
        if ch in "])": depth -= 1
        if ch == "," and depth == 0:
            out.append(cur.strip()); cur = ""
        else:
            cur += ch
    if cur.strip(): out.append(cur.strip())
    return out

TRANS = ("v_exp_", "v_log_", "v_rcp_", "v_rsq_", "v_sqrt_", "v_sin_", "v_cos_")

class Ins:
    __slots__ = ("text", "op", "dst", "src", "kind", "passes", "srcC", "srcAB", "dpp", "states", "storedata", "sdwa")
    def __init__(self, text):
        self.text = text
        t = text.split(";")[0].strip()
        parts = t.split(None, 1)
        op = parts[0]; self.op = op
        rest = parts[1] if len(parts) > 1 else ""
        ops = split_ops(rest)
        mods = ""
        if ops:
            l = ops[-1].split(None, 1)
            ops[-1] = l[0]
            mods = l[1] if len(l) > 1 else ""
        R = [parse_reg(o) for o in ops]
        self.dst = []; self.src = []; self.passes = 0; self.srcC = []; self.srcAB = []
        self.dpp = ("_dpp" in op) or ("row_" in mods) or ("quad_perm" in mods)
        self.sdwa = "_sdwa" in op
        self.states = 1; self.storedata = []
        if op == "s_nop":
            self.kind = "nop"; self.states = int(ops[0], 0) + 1
        elif op.startswith("v_mfma") or op.startswith("v_smfmac"):
            self.kind = "mfma"
            self.dst = R[0]; self.srcAB = R[1] + R[2]
            if op.startswith("v_smfmac"):
                self.srcC = R[0]; self.srcAB += R[3]
            else:
                self.srcC = R[3]
            self.src = self.srcAB + self.srcC
            if "32x32x16" in op or "32x32x8" in op or "32x32x32" in op: self.passes = 8
            elif "16x16x32" in op or "16x16x16" in op or "16x16x64" in op: self.passes = 4
            else: raise ValueError("mfma passes? " + op)
        elif op.startswith("v_"):
            self.kind = "valu"
            if op.startswith("v_cmp"):
                self.dst = R[0]; self.src = sum(R[1:], [])
                if op.startswith("v_cmpx"): self.dst = self.dst + parse_reg("exec")
            elif "permlane" in op and "swap" in op:
                self.dst = R[0] + R[1]; self.src = R[0] + R[1]
            elif op.startswith(("v_add_co", "v_sub_co", "v_subrev_co", "v_addc_co", "v_subb_co", "v_div_scale", "v_mad_u64_u32")):
                self.dst = R[0] + R[1]; self.src = sum(R[2:], [])
            elif op == "v_nop":
                pass
            else:
                self.dst = R[0]; self.src = sum(R[1:], [])
                if op.startswith(("v_fmac", "v_pk_fmac", "v_dot2c", "v_writelane")) or self.dpp or self.sdwa:
                    self.src = self.src + R[0]
                if op.startswith("v_cndmask") and len(ops) == 3:
                    self.src = self.src + parse_reg("vcc")
        elif op.startswith("ds_"):
            self.kind = "ds"
            if op.startswith(("ds_read", "ds_bpermute", "ds_permute", "ds_swizzle")) or "_rtn" in op:
                self.dst = R[0]; self.src = sum(R[1:], [])
            else:
                self.src = sum(R, [])
        elif op.startswith(("global_", "buffer_", "flat_")):
            self.kind = "vmem"
            islds = ("_lds_" in op) or (" lds" in (" " + mods))
            if op in ("buffer_wbl2", "buffer_inv"):
                pass
            elif islds:
                self.src = sum(R, []) + [("s", "m0")]; self.kind = "vmemlds"
            elif "_load" in op:
                self.dst = R[0]; self.src = sum(R[1:], [])
            elif "_store" in op:
                self.src = sum(R, [])
                data = R[1] if op.startswith(("global_", "flat_")) else R[0]
                if len(data) >= 3: self.storedata = data
            elif "_atomic" in op:
                if "sc0" in mods:
                    if op.startswith("global_"): self.dst = R[0]; self.src = sum(R[1:], [])
                    else: self.dst = R[0]; self.src = sum(R, [])
                else:
                    self.src = sum(R, [])
            else:
                raise ValueError(op)
        elif op.startswith("s_"):
            self.kind = "salu"
            if op.startswith(("s_cmp", "s_cbranch", "s_branch", "s_waitcnt", "s_barrier", "s_endpgm", "s_sleep", "s_setprio", "s_bitcmp", "s_setpc")):
                self.src = sum(R, [])
            else:
                self.dst = R[0] if R else []
                self.src = sum(R[1:], [])
                if "saveexec" in op: self.dst = self.dst + parse_reg("exec")
        else:
            raise ValueError("unknown op: " + text)

def overlap(a, b):
    if not a or not b: return False
    sa = set(a)
    return any(x in sa for x in b)

def need(p, c):
    n = 0
    isvm = c.kind in ("vmem", "vmemlds")
    if p.kind == "valu":
        pv = [r for r in p.dst if r[0] in "va"]; ps = [r for r in p.dst if r[0] == "s"]
        if c.kind == "mfma" and overlap(pv, c.src): n = max(n, 2)
        if c.kind == "valu":
            if c.dpp and overlap(pv, c.src): n = max(n, 2)
            if "permlane" in c.op and overlap(pv, c.src): n = max(n, 2)
            if c.op.startswith(("v_readlane", "v_readfirstlane")) and overlap(pv, c.src): n = max(n, 1)
            if p.op.startswith(TRANS) and overlap(pv, c.src) : n = max(n, 1)
            if (p.sdwa or "op_sel" in p.text) and (overlap(pv, c.src) or overlap(pv, c.dst)): n = max(n, 1)
            if overlap(ps, c.src):
                n = max(n, 4 if c.op.startswith(("v_readlane", "v_writelane", "v_div_fmas")) else 2)
        if isvm and overlap(ps, c.src): n = max(n, 5)
        if ("s", "exec_lo") in ps:
            if c.kind == "valu" and (c.dpp): n = max(n, 5)
            if c.kind == "valu" and ("permlane" in c.op or "lane" in c.op): n = max(n, 4)
            if c.kind == "mfma": n = max(n, 4)
        if p.op.startswith(TRANS) and c.kind in ("vmem", "ds") and overlap(pv, c.src): n = max(n, 1)
    if p.kind == "valu" and p.op.startswith("v_dot"):
        if c.op == p.op:
            if overlap(p.dst, c.src[:-1]): n = max(n, 3)
        elif overlap(p.dst, c.src) or overlap(p.dst, c.dst): n = max(n, 3)
    if p.kind == "salu":
        if ("s", "m0") in p.dst and c.kind == "vmemlds": n = max(n, 1)
    if p.kind == "vmem" and p.storedata:
        if overlap(p.storedata, c.dst): n = max(n, 2)
    if p.kind == "mfma":
        k = {4: 0, 8: 1}[p.passes]
        if c.kind == "mfma":
            if overlap(p.dst, c.srcAB): n = max(n, (8, 12)[k])
            if overlap(p.dst, c.srcC):
                if p.dst == c.srcC and p.passes == c.passes: pass
                else: n = max(n, (6, 10)[k])
            elif overlap(p.dst, c.dst): n = max(n, (6, 10)[k])
        elif c.kind in ("valu", "ds", "vmem", "vmemlds"):
            if overlap(p.dst, c.src) or overlap(p.dst, c.dst): n = max(n, (8, 12)[k])
            if c.kind == "valu" and overlap(p.srcC, c.dst): n = max(n, (3, 7)[k])
    return n

class Asm:
    def __init__(self):
        self.lines = []
        self.uid = 0
    def __call__(self, s):
        for ln in s.split("\n"):
            ln = ln.strip()
            if ln: self.lines.append(ln)
        return self
    def label(self, base="L"):
        self.uid += 1
        return f"{base}_{self.uid}"
    def text(self, pad=True, report=None):
        out = []; hist = []
        now = 0; mfree = 0
        for ln in self.lines:
            t = ln.split(";")[0].strip()
            if not t or t.endswith(":") or t.startswith("."):
                out.append(ln)
                if t.endswith(":"): mfree = 0
                continue
            ins = Ins(ln)
            ti = now
            if ins.kind == "mfma": ti = max(ti, mfree)
            if pad:
                req = 0
                n_between = 0
                for p, tp in reversed(hist):
                    nn = need(p, ins)
                    dist = (ti - tp - 1) if p.kind == "mfma" else n_between
                    if nn - dist > req:
                        req = nn - dist if p.kind != "mfma" else max(req, tp + 1 + nn - now)
                    n_between += p.states
                    if n_between >= 24: break
                if req > 0:
                    if report is not None: report.append((req, ln))
                    nop = f"s_nop {req-1}"
                    out.append(nop); hist.append((Ins(nop), now)); now += req
                    ti = max(now, mfree) if ins.kind == "mfma" else now
            out.append(ln); hist.append((ins, ti))
            now = ti + ins.states
            if ins.kind == "mfma": mfree = ti + ins.passes
            if len(hist) > 60: hist = hist[-40:]
        return "\n".join(out) + "\n"

def nops(c):
    L = []; n = c // 4
    while n > 0:
        k = min(n, 16); L.append(f"s_nop {k-1}"); n -= k
    return "\n".join(L)

HDR = """.amdgcn_target "amdgcn-amd-amdhsa--gfx950"
.text
"""
def kernel_text(name, body, vgpr=512, sgpr=102, accum=256):
    return f""".globl {name}
.p2align 8
.type {name},@function
{name}:
{body}
s_endpgm
.section .rodata,"a"
.p2align 6
.amdhsa_kernel {name}
  .amdhsa_next_free_vgpr {vgpr}
  .amdhsa_next_free_sgpr {sgpr}
  .amdhsa_accum_offset {accum}
  .amdhsa_group_segment_fixed_size 0
  .amdhsa_kernarg_size 104
  .amdhsa_user_sgpr_count 2
  .amdhsa_user_sgpr_kernarg_segment_ptr 1
  .amdhsa_system_sgpr_workgroup_id_x 1
  .amdhsa_float_denorm_mode_32 3
.end_amdhsa_kernel
.text
"""

class Seq:
    def __init__(self): self.items = []; self.vm0 = []
    def pending_vm(self, tag): self.vm0.append(tag)
    def add(self, x):
        if isinstance(x, list):
            for y in x: self.add(y)
        elif x: self.items.append(x)
    def resolve(self):
        lds = []; vm = list(self.vm0); out = []
        for it in self.items:
            if isinstance(it, tuple) and it[0] == "PL": lds.append(it[1]); continue
            if isinstance(it, tuple) and it[0] == "PV": vm.append(it[1]); continue
            if isinstance(it, tuple) and it[0] in ("WL", "WV"):
                q = lds if it[0] == "WL" else vm
                idx = [max(i for i, t in enumerate(q) if t == tg) for tg in it[1]]
                n = len(q) - 1 - max(idx)
                if it[0] == "WL":
                    assert n <= 15, n
                    out.append(f"s_waitcnt lgkmcnt({n})")
                else:
                    assert n <= 63
                    out.append(f"s_waitcnt vmcnt({n})")
                continue
            txt, tag = it if isinstance(it, tuple) else (it, None)
            for ln in txt.split("\n"):
                ln = ln.strip()
                if not ln: continue
                op = ln.split()[0]
                if op.startswith("ds_"): lds.append(tag)
                elif op.startswith(("global_", "buffer_")): vm.append(tag)
                out.append(ln)
        return out
def WL(*tags): return ("WL", tags)
def WV(*tags): return ("WV", tags)

class Gaps:
    def __init__(self): self.mf = []; self.p = {}; self.m = {}; self.v = {}
    def M(self, x): self.mf.append(x); return len(self.mf) - 1
    def _a(self, d, i, xs):
        for x in xs:
            if isinstance(x, list): d.setdefault(i, []).extend(x)
            elif x: d.setdefault(i, []).append(x)
    def P(self, i, *x): self._a(self.p, i, x)
    def D(self, i, *x): self._a(self.m, i, x)
    def V(self, i, *x): self._a(self.v, i, x)
    def spreadD(self, i, xs, per=1):
        for k, x in enumerate(xs): self.D(i + k // per, x)
    def spreadV(self, i, xs, per=1):
        for k, x in enumerate(xs): self.V(i + k // per, x)
    def emit(self, seq):
        for k in list(self.p) + list(self.m) + list(self.v): assert -1 <= k < len(self.mf), k
        for i in range(-1, len(self.mf)):
            if i >= 0: seq.add(self.mf[i])
            for d in (self.p, self.m, self.v): seq.add(d.get(i, []))
```

```python
from asmlib import *
from layout import *

L_MEM, L_Q, L_K, L_V, L_SX, L_O, L_CT, L_W = 0x0000, 0x2000, 0x3000, 0x3800, 0x0000, 0x0800, 0x2C00, 0x4000
WREG = 0x9000
QTS = 288

S_WS, S_H, S_W, S_STEP = 4, 8, 9, 10
S_IBW, S_IBW2 = 12, 14
S_IBR = 16
S_TAG, S_OWN = 18, 19
S_MB, S_MB2 = 20, 22
S_KV, S_FL, S_KM = 24, 26, 28
S_GS = 35
S_C = 30
S_W2K = 31
S_MLO = 32
S_CNT = 34
S_T = 36
S_U = 42
S_GM = 44
S_BX = 46
S_RDY = 49
S_FSR = 52
S_FHD = 56
S_ST = 60

V_L16, V_IDX, V_WL, V_KW, V_QW, V_QT, V_KT, V_OW, V_OR, V_ST0, V_POLL, V_KXA, V_SXW, V_T0, V_PUB, V_KP = range(16)
A0, QT, AC0, AC1, VX, KX, S0 = 16, 48, 64, 72, 80, 88, 96
AC2 = S0 + 8
KVN = 128

LDS_RES = [("q", 0), ("q", 1), ("k", 0), ("k", 2), ("k", 3), ("v", 7), ("o", 5), ("o", 6), ("o", 7)]
RF_RES = [(m, i) for m in "qkvo" for i in range(8) if (m, i) not in LDS_RES]
def rf_reg(m, i):
    j = RF_RES.index((m, i))
    return ("a", 16 * j) if j < 16 else ("v", 144 + 16 * (j - 16))
STAGE = {("q", 0): (S0, S0 + 8), ("q", 1): (S0 + 16, S0 + 24), ("k", 0): (QT, QT + 8), ("k", 2): (S0, S0 + 8), ("k", 3): (S0 + 16, S0 + 24),
         ("v", 7): (S0, S0 + 16), ("o", 5): (AC0, AC1), ("o", 6): (S0, S0 + 8), ("o", 7): (S0 + 16, S0 + 24)}
def wop(m, i, tb):
    if (m, i) in STAGE: return vr(STAGE[(m, i)][tb], 8)
    p, b = rf_reg(m, i)
    return vr(b + 8 * tb, 8, p)
def refill(m, i, tb):
    slot = (len(RF_RES) + LDS_RES.index((m, i))) % 9; b = STAGE[(m, i)][tb]
    return [(f"ds_read_b128 {vr(b+4*j,4)}, v{V_WL} offset:{slot*4096 + tb*2048 + j*1024}", f"{m}{i}{tb}") for j in range(2)]
def smf(d, a, m, i, tb):
    return f"v_smfmac_f32_16x16x64_bf16 {vr(d,4)}, {vr(a,4)}, {wop(m,i,tb)}, v{V_IDX}"
def zero(r): return f"v_mov_b64 {vr(r,2)}, 0"

def setup(a):
    n, g, r, c, g1, g0, r1, r0, n7, n3, t, u = range(20, 32)
    a(f"""
v_and_b32 v{n}, 15, v0
v_lshrrev_b32 v{g}, 4, v0
v_bfe_u32 v{r}, v0, 2, 2
v_and_b32 v{c}, 3, v0
v_lshrrev_b32 v{g1}, 5, v0
v_bfe_u32 v{g0}, v0, 4, 1
v_bfe_u32 v{r1}, v0, 3, 1
v_bfe_u32 v{r0}, v0, 2, 1
v_and_b32 v{n7}, 7, v0
v_bfe_u32 v{t}, v0, 1, 1
v_mul_u32_u24 v{t}, 0xAAAA, v{t}
v_or_b32 v{V_IDX}, 0x4444, v{t}
v_cmp_gt_u32 s[{S_MLO}:{S_MLO+1}], 8, v{n}
s_cmp_eq_u32 s{S_W}, 0
s_cselect_b32 s{S_GM}, 1, 0
s_mov_b32 s{S_GM+1}, 0
v_lshlrev_b32 v{t}, 2, v{g1}
v_lshl_add_u32 v{t}, v{g0}, 3, v{t}
v_add_u32 v{t}, v{t}, v{r0}
v_lshlrev_b32 v{t}, 4, v{t}
v_mul_u32_u24 v{u}, {QTS}, v{r1}
v_add_u32 v{t}, v{t}, v{u}
v_and_b32 v{u}, 1, v0
v_lshl_add_u32 v{t}, v{u}, 3, v{t}
v_add_u32 v{V_QT}, {L_Q}, v{t}
; KT = L_K + (g>>1)*512 + c*64 + (4(g&1) + r)*8
v_lshlrev_b32 v{t}, 9, v{g1}
v_lshl_add_u32 v{t}, v{c}, 6, v{t}
v_lshl_add_u32 v{t}, v{g0}, 5, v{t}
v_lshl_add_u32 v{t}, v{r}, 3, v{t}
v_add_u32 v{V_KT}, {L_K}, v{t}
s_mul_i32 s{S_T}, s{S_W}, {2*QTS}
s_add_u32 s{S_T}, s{S_T}, {L_Q}
v_lshlrev_b32 v{t}, 4, v{n}
v_lshl_add_u32 v{t}, v{g}, 2, v{t}
v_add_u32 v{V_QW}, s{S_T}, v{t}
; KW = w*512 + (n>>3)*256 + g*64 + (n&7)*8
s_lshl_b32 s{S_T}, s{S_W}, 9
v_lshlrev_b32 v{t}, 8, v{r1}
v_lshl_add_u32 v{t}, v{g}, 6, v{t}
v_lshl_add_u32 v{t}, v{n7}, 3, v{t}
v_add_u32 v{V_KW}, s{S_T}, v{t}
; OW = w*512 + g*128 + (n&7)*16 + (n>>3)*8
v_lshlrev_b32 v{t}, 7, v{g}
v_lshl_add_u32 v{t}, v{n7}, 4, v{t}
v_lshl_add_u32 v{t}, v{r1}, 3, v{t}
v_add_u32 v{V_OW}, s{S_T}, v{t}
v_and_b32 v{u}, 1, v0
v_lshl_add_u32 v{u}, v{r}, 1, v{u}
v_lshlrev_b32 v{u}, 4, v{u}
v_lshl_add_u32 v{V_OR}, v{g}, 7, v{u}
v_lshl_add_u32 v{u}, v{g}, 8, v{u}
v_bfe_u32 v{t}, v0, 1, 1
v_lshl_add_u32 v{V_KXA}, v{t}, 7, v{u}
; SXW = (2w + (g>>1))*128 + (n&7)*16 + (g&1)*8
s_lshl_b32 s{S_T}, s{S_W}, 8
v_lshlrev_b32 v{t}, 7, v{g1}
v_lshl_add_u32 v{t}, v{n7}, 4, v{t}
v_lshl_add_u32 v{t}, v{g0}, 3, v{t}
v_add_u32 v{V_SXW}, s{S_T}, v{t}
s_lshl_b32 s{S_T}, s{S_W}, 3
v_add_u32 v{t}, s{S_T}, v{g}
v_lshlrev_b32 v{t}, 13, v{t}
s_lshl_b32 s{S_T}, s{S_H}, 8
v_add_u32 v{t}, s{S_T}, v{t}
v_lshl_add_u32 v{V_ST0}, v{n}, 4, v{t}
s_lshl_b32 s{S_W2K}, s{S_W}, 11
v_lshlrev_b32 v{t}, 4, v0
v_add_u32 v{V_POLL}, s{S_W2K}, v{t}
v_bfe_u32 v{t}, v0, 1, 2
v_lshlrev_b32 v{t}, 8, v{t}
v_and_b32 v{u}, 1, v0
v_lshl_add_u32 v{t}, v{u}, 4, v{t}
v_lshl_add_u32 v{t}, v{g1}, 5, v{t}
v_lshl_add_u32 v{t}, v{g0}, 3, v{t}
s_lshr_b32 s{S_T}, s{S_H}, 2
s_lshl_b32 s{S_T}, s{S_T}, 10
s_and_b32 s{S_T+1}, s{S_H}, 3
s_lshl_b32 s{S_T+1}, s{S_T+1}, 6
s_add_u32 s{S_T}, s{S_T}, s{S_T+1}
v_add_u32 v{V_PUB}, s{S_T}, v{t}
; KP = w*1024 + l*16
s_lshl_b32 s{S_T}, s{S_W}, 10
v_lshlrev_b32 v{t}, 4, v0
v_add_u32 v{V_KP}, s{S_T}, v{t}
s_xor_b32 s{S_BX}, s{S_W2K}, 0x800
s_xor_b32 s{S_BX+1}, s{S_W2K}, 0x1000
s_xor_b32 s{S_BX+2}, s{S_W2K}, 0x1800
v_lshlrev_b32 v{t}, 4, v{g1}
v_lshl_add_u32 v{t}, v{g0}, 2, v{t}
v_lshl_add_u32 v{t}, v{r1}, 3, v{t}
v_add_u32 v{t}, v{t}, v{r0}
v_lshlrev_b32 v{t}, 6, v{t}
v_lshl_add_u32 v36, v{c}, 3, v{t}
v_lshlrev_b32 v{t}, 4, v{g0}
v_lshl_add_u32 v{t}, v{g1}, 2, v{t}
v_add_u32 v{t}, v{t}, v{r0}
v_lshlrev_b32 v{t}, 6, v{t}
v_lshl_add_u32 v{t}, v{r1}, 5, v{t}
v_lshl_add_u32 v37, v{c}, 3, v{t}
v_lshrrev_b32 v{t}, 2, v0
v_lshlrev_b32 v{u}, 13, v{t}
v_lshl_add_u32 v32, v{c}, 4, v{u}
v_lshlrev_b32 v{u}, 10, v{t}
v_lshl_add_u32 v33, v{c}, 4, v{u}
v_and_b32 v{t}, 1, v0
v_lshlrev_b32 v{t}, 4, v{t}
v_mov_b32 v{u}, 0x3f80
v_lshlrev_b32 v{u}, v{t}, v{u}
v_bfe_u32 v{t}, v0, 1, 2
""")
    for j in range(4):
        a(f"v_cmp_eq_u32 vcc, {j}, v{t}\nv_cndmask_b32 v{40+j}, 0, v{u}, vcc")
    a(f"""
v_lshlrev_b32 v{V_L16}, 4, v0
ds_write_b128 v{V_L16}, v[40:43] offset:{L_CT}
s_mul_i32 s{S_T}, s{S_W}, {WREG}
s_add_u32 s{S_T}, s{S_T}, {L_W}
v_add_u32 v{V_WL}, s{S_T}, v{V_L16}
v_add_u32 v36, s{S_T}, v36
v_add_u32 v37, s{S_T}, v37
s_mov_b32 s{S_C}, 0x3e0293ee      ; 128^-0.5 * log2(e)
s_add_u32 s{S_IBW}, s{S_WS}, {WS_INBOX}
s_addc_u32 s{S_IBW+1}, s{S_WS+1}, 0
s_add_u32 s{S_IBW2}, s{S_WS}, {WS_INBOX + 0x8000}
s_addc_u32 s{S_IBW2+1}, s{S_WS+1}, 0
s_lshl_b32 s{S_T}, s{S_H}, 13
s_add_u32 s{S_T}, s{S_T}, 4096
s_add_u32 s{S_IBR}, s{S_IBW}, s{S_T}
s_addc_u32 s{S_IBR+1}, s{S_IBW+1}, 0
s_lshl_b32 s{S_OWN}, 1, s{S_H}
s_not_b32 s{S_OWN}, s{S_OWN}
s_add_u32 s{S_MB}, s{S_WS}, {WS_MEMB}
s_addc_u32 s{S_MB+1}, s{S_WS+1}, 0
s_add_u32 s{S_MB2}, s{S_WS}, {WS_MEMB + 0x2000}
s_addc_u32 s{S_MB2+1}, s{S_WS+1}, 0
s_add_u32 s{S_FL}, s{S_WS}, {WS_MEMB + 0x4000}
s_addc_u32 s{S_FL+1}, s{S_WS+1}, 0
s_mov_b32 s{S_GS}, 0
s_waitcnt lgkmcnt(0)
""")

def init_sentinels(a, stf):
    a(f"""
v_mov_b64 v[40:41], -1
v_mov_b64 v[46:47], 0
v_mov_b64 v[48:49], 0
global_store_dwordx4 v{V_POLL}, v[46:49], s[{S_IBR}:{S_IBR+1}] offset:-4096 {stf}
global_store_dwordx4 v{V_POLL}, v[46:49], s[{S_IBR}:{S_IBR+1}] offset:-3072 {stf}
global_store_dwordx2 v{V_PUB}, v[40:41], s[{S_MB}:{S_MB+1}] {stf}
global_store_dwordx2 v{V_PUB}, v[40:41], s[{S_MB2}:{S_MB2+1}] {stf}
s_lshl_b32 s{S_T}, s{S_H}, 2
v_mov_b32 v44, s{S_T}
global_store_dword v44, v40, s[{S_FL}:{S_FL+1}] {stf}
""")

def load_weights(a):
    order = RF_RES + LDS_RES
    SB = {"q": 50, "k": 52, "v": 54, "o": 56}
    a(f"""
s_load_dwordx2 s[50:51], s[0:1], {KA_WQ}
s_load_dwordx2 s[52:53], s[0:1], {KA_WK}
s_load_dwordx2 s[54:55], s[0:1], {KA_WV}
s_load_dwordx2 s[56:57], s[0:1], {KA_WO}
s_lshl_b32 s{S_T}, s{S_H}, 8
s_lshl_b32 s{S_T+1}, s{S_W}, 6
s_add_u32 s{S_T}, s{S_T}, s{S_T+1}
v_add_u32 v32, s{S_T}, v32          ; + h*256 + w*64
s_lshl_b32 s{S_T}, s{S_H}, 17
s_lshl_b32 s{S_T+1}, s{S_W}, 8
s_add_u32 s{S_T}, s{S_T}, s{S_T+1}
v_add_u32 v33, s{S_T}, v33          ; + h*128*1024 + w*256
s_mul_i32 s58, s{S_W}, {WREG}
s_add_u32 s58, s58, {L_W}
s_lshl_b32 s59, s{S_W}, 1
s_waitcnt lgkmcnt(0)
""")
    def dma(n):
        m, i = order[n]; sl = n % 9
        if m != "o":
            a(f"s_xor_b32 s{S_T}, s59, {i}\ns_lshl_b32 s{S_T}, s{S_T}, 19\nv_add_u32 v35, s{S_T}, v32")
            step = 16 * 8192
        else:
            u, ks = i >> 1, i & 1
            a(f"v_add_u32 v35, {ks*65536 + u*64}, v33")
            step = 16 * 1024
        for j in range(4):
            a(f"s_add_u32 m0, s58, {sl*4096 + j*1024}")
            if j > 0: a(f"v_add_u32 v35, {step}, v35")
            a(f"global_load_lds_dwordx4 v35, s[{SB[m]}:{SB[m]+1}]")
    def trans(n):
        m, i = order[n]; sl = n % 9
        if n < 23: p, b = rf_reg(m, i)
        else: p, b = "v", S0
        for tb in range(2):
            for pp in range(4):
                if m != "o": off = (32 * (pp >> 1) + 2 * (pp & 1)) * 64 + tb * 32
                else: off = (32 * tb + 8 * (pp >> 1) + 2 * (pp & 1)) * 64
                a(f"ds_read_b64_tr_b16 {vr(b + 8*tb + 2*pp, 2, p)}, v{36 if m != 'o' else 37} offset:{sl*4096 + off}")
        a("s_waitcnt lgkmcnt(0)")
        if n >= 23:
            for j in range(4):
                a(f"ds_write_b128 v{V_WL}, {vr(S0+4*j,4)} offset:{sl*4096 + j*1024}")
            a("s_waitcnt lgkmcnt(0)")
    for n in range(9): dma(n)
    for n in range(32):
        left = min(31 - n, 8)
        a(f"s_waitcnt vmcnt({4*left})")
        trans(n)
        if n + 9 < 32: dma(n + 9)

def shadow_lds():
    return [x[0] for m, i in [("q", 0), ("q", 1), ("k", 0)] for tb in range(2) for x in refill(m, i, tb)]
def shadow_addr():
    return [f"v_add_u32 v{A0+8*b+4}, s{S_BX+b-1}, v{V_L16}" for b in range(1, 4)]

def kv_load(j):
    return f"global_load_dwordx4 {vr(KVN+4*j,4)}, v{V_KXA if j < 2 else V_L16}, s[{S_KV}:{S_KV+1}] offset:{j*1024} sc1"
def kv_reads():
    return [f"v_mov_b64 {vr(KX+2*j,2)}, {vr(KVN+2*j,2)}" for j in range(4)] + \
           [f"v_mov_b64 {vr(VX+2*j,2)}, {vr(KVN+8+2*(j if j < 2 else 5-j),2)}" for j in range(4)]

def kv_ready(a, cfg):
    L = a.label("L_kvr")
    t = KVN
    a(f"""s_mov_b32 s{S_CNT}, 0
s_mov_b64 exec, 15
{L}:
global_load_dwordx4 {vr(t,4)}, v{V_L16}, s[{S_FHD}:{S_FHD+1}] sc1
s_add_u32 s{S_CNT}, s{S_CNT}, 1
s_cmp_gt_u32 s{S_CNT}, {cfg.get("tmo", 400000)}
s_cbranch_scc1 L_fail
s_waitcnt vmcnt(0)
v_min3_u32 v{t}, v{t}, v{t+1}, v{t+2}
v_min_u32 v{t}, v{t}, v{t+3}
v_readlane_b32 s{S_T}, v{t}, 0
v_readlane_b32 s{S_T+1}, v{t}, 1
v_readlane_b32 s{S_T+2}, v{t}, 2
v_readlane_b32 s{S_T+3}, v{t}, 3
s_min_u32 s{S_T}, s{S_T}, s{S_T+1}
s_min_u32 s{S_T+2}, s{S_T+2}, s{S_T+3}
s_min_u32 s{S_T}, s{S_T}, s{S_T+2}
s_lshl_b32 s{S_RDY}, s{S_T}, 2
s_sub_u32 s{S_RDY}, s{S_RDY}, 2
s_cmp_eq_u32 s{S_T}, 16
s_cselect_b32 s{S_RDY}, 100, s{S_RDY}
s_cmp_lt_i32 s{S_STEP}, s{S_RDY}
s_cbranch_scc0 {L}
s_mov_b64 exec, -1""")

def layer_start(a, layer, cfg={}):
    a(f"""
s_load_dwordx2 s[50:51], s[0:1], {KA_MEM0}
s_lshl_b32 s{S_T}, s{S_H}, 14
s_lshl_b32 s{S_T+1}, s{S_W}, 12
s_add_u32 s{S_T}, s{S_T}, s{S_T+1}
s_add_u32 s{S_T+1}, s{S_T}, {WS_KV + layer*32*MB}
s_add_u32 s{S_KV}, s{S_WS}, s{S_T+1}
s_addc_u32 s{S_KV+1}, s{S_WS+1}, 0
s_lshl_b32 s{S_T}, s{S_H}, 12
s_add_u32 s{S_T}, s{S_T}, {WS_KM + layer*8*MB - 0x20000}
s_add_u32 s{S_KM}, s{S_WS}, s{S_T}
s_addc_u32 s{S_KM+1}, s{S_WS+1}, 0
s_mov_b32 s{S_STEP}, -1
v_and_b32 v34, 0x70, v{V_OR}
v_lshlrev_b32 v34, 6, v34
v_bfe_u32 v35, v{V_L16}, 8, 2
v_lshl_add_u32 v34, v35, 5, v34
v_bfe_u32 v35, v{V_L16}, 5, 1
v_lshl_add_u32 v34, v35, 4, v34
s_lshl_b32 s{S_T}, s{S_W}, 8
v_add_u32 v34, s{S_T}, v34
s_waitcnt lgkmcnt(0)
global_load_dwordx4 {vr(A0,4)}, v34, s[50:51]
global_load_dwordx4 {vr(A0+4,4)}, v34, s[50:51] offset:128
""")
    if cfg.get("sync"):
        a(f"""s_lshl_b32 s{S_T}, s{S_H}, 7
s_add_u32 s{S_T}, s{S_T}, {WS_FLAGS + layer*FL_LAYER + FL_HD}
s_add_u32 s{S_FHD}, s{S_WS}, s{S_T}
s_addc_u32 s{S_FHD+1}, s{S_WS+1}, 0
s_lshl_b32 s{S_T}, s{S_W}, 2
s_add_u32 s{S_T}, s{S_T}, 96
s_add_u32 s{S_FSR}, s{S_FHD}, s{S_T}
s_addc_u32 s{S_FSR+1}, s{S_FHD+1}, 0
s_mov_b32 s{S_FSR+2}, 4
s_mov_b32 s{S_FSR+3}, 0x20000""")
        kv_ready(a, cfg)
    for x in shadow_lds() + [zero(AC0 + 2 * j) for j in range(8)] + [kv_load(j) for j in range(4)]: a(x)
    a("s_waitcnt vmcnt(0) lgkmcnt(0)")
    for x in kv_reads(): a(x)
    a(f"""s_waitcnt lgkmcnt(0)
ds_write_b128 v{V_POLL}, {vr(A0,4)} offset:{L_MEM}
ds_write_b128 v{V_POLL}, {vr(A0+4,4)} offset:{L_MEM+1024}""")

def swap(p, q):
    return [f"s_mov_b64 s[{S_T}:{S_T+1}], s[{p}:{p+1}]", f"s_mov_b64 s[{p}:{p+1}], s[{q}:{q+1}]", f"s_mov_b64 s[{q}:{q+1}], s[{S_T}:{S_T+1}]"]

def step_loop(a, cfg, tag):
    stf = cfg.get("stf", "")
    only = cfg.get("only")
    st = (lambda i: f"s_mem{'real' if cfg.get('rt') else ''}time s[{S_ST+2*i}:{S_ST+2*i+1}]" if (not only or i in only) else "") if cfg.get("stamp") else (lambda i: "")
    cnt = (lambda r: f"s_add_u32 s{r}, s{r}, s{S_CNT}") if (cfg.get("stamp") or cfg.get("cnt")) else (lambda r: "")
    Ab = lambda i: A0 + 4 * i
    L_top, L_last, L_fail = f"L_ch_top{tag}", f"L_ch_last{tag}", "L_fail"
    L_comm, L_p1, L_p1r, L_p2, L_p2c, L_nr, L_pf, L_p2r = [f"L_ch_{x}{tag}" for x in ("comm", "p1", "p1r", "p2", "p2c", "nr", "pf", "p2r")]
    tmo = cfg.get("tmo", 400000)
    SEL = KX; RD = KX + 4; MX = VX; NEG = VX + 2; FO = VX + 4; FD = VX + 5; VM = KX
    FA = A0 + 8; FV = A0 + 9
    L_p1b, L_p2w = f"L_ch_p1b{tag}", f"L_ch_p2w{tag}"
    inbox_loads = [f"global_load_dwordx4 {vr(Ab(i),4)}, v{V_L16}, s[{S_IBR}:{S_IBR+1}] offset:{1024*i-4096} sc1" for i in range(8)]
    pre = shadow_lds() + [zero(AC0 + 2 * j) for j in range(8)]
    DF = cfg.get("DF", 4)
    fpoll = f"global_load_dword v{FV}, v{FA}, s[{S_FL}:{S_FL+1}] sc1"
    poll2 = f"""global_load_dwordx4 {vr(Ab(0),4)}, v{V_POLL}, s[{S_MB}:{S_MB+1}] sc1
global_load_dwordx4 {vr(Ab(1),4)}, v{V_POLL}, s[{S_MB}:{S_MB+1}] offset:1024 sc1"""
    timeout = f"s_add_u32 s{S_CNT}, s{S_CNT}, 1\ns_cmp_gt_u32 s{S_CNT}, {tmo}\ns_cbranch_scc1 {L_fail}"
    def flagwait(lbl):
        a(f"""v_bfe_u32 v{FA}, v{V_L16}, 2, 7
v_mov_b32 v{FV}, -1
s_mov_b32 exec_hi, 0
s_mov_b32 exec_lo, s{S_OWN}
{lbl}:
{fpoll}
{timeout}
{nops(cfg.get("gf", 0))}
s_waitcnt vmcnt(40)
v_cmp_ne_u32 vcc, s{S_GS}, v{FV}
s_cbranch_vccnz {lbl}
s_mov_b64 exec, -1
""")
    a(f"s_branch {L_top}")
    a(f"{L_p1r}:\ns_mov_b64 exec, 1\nglobal_store_dword v{FO}, v{NEG}, s[{S_FL}:{S_FL+1}] {stf}\ns_mov_b64 exec, -1\n{timeout}")
    for x in inbox_loads: a(x)
    a(f"s_branch {L_p1b}")
    a(f"{L_p2r}:\ns_mov_b64 s[{S_U}:{S_U+1}], vcc")
    if cfg.get("cnt") or cfg.get("stamp"): a("s_add_u32 s89, s89, 1")
    if DF: flagwait(L_p2w)
    else: a(timeout)
    a(f"s_mov_b64 exec, s[{S_U}:{S_U+1}]\n{poll2}\ns_mov_b64 exec, -1\ns_branch {L_p2}")
    if cfg.get("sync"):
        a(f"L_ch_kvw{tag}:")
        kv_ready(a, cfg)
        a(f"s_branch L_ch_kvb{tag}")
    a(f"{L_nr}:")
    for x in pre: a(x)
    a(f"s_waitcnt vmcnt(2) lgkmcnt(12)")
    for x in kv_reads(): a(x)
    a(f"s_mov_b32 s{S_CNT}, 0\ns_cmp_eq_u32 s{S_W}, 1\ns_cbranch_scc0 L_ch_nb{tag}")
    if DF:
        if cfg.get("df0"): a(nops(cfg["df0"]))
        flagwait(L_pf)
    a(f"L_ch_nb{tag}:\ns_barrier")
    if cfg.get("d2"): a(nops(cfg["d2"]))
    a(st(1))
    a(poll2)
    a(f"{cnt(87)}\ns_mov_b32 s{S_CNT}, 0")
    a(f"s_branch {L_p2c}")
    a(f"{L_comm}:")
    k1 = cfg.get("k1", 4); k2 = cfg.get("k2", 20)
    for x in pre[:k1]: a(x)
    if cfg.get("d1"): a(nops(cfg["d1"]))
    a(st(5))
    for x in inbox_loads: a(x)
    a(f"s_lshl_b32 s{S_T}, s{S_H}, 2\nv_mov_b32 v{FO}, s{S_T}\nv_mov_b32 v{FD}, s{S_GS}\nv_mov_b64 {vr(NEG,2)}, -1\ns_mov_b32 s{S_CNT}, 0")
    for x in pre[k1:k2]: a(x)
    a(f"s_waitcnt lgkmcnt({min(k2, 12)})")
    a(f"{L_p1b}:")
    if cfg.get("dfs"): a(nops(cfg["dfs"]))
    fw = cfg.get("fw", 0)
    fstore = f"s_mov_b64 exec, 1\nglobal_store_dword v{FO}, v{FD}, s[{S_FL}:{S_FL+1}] {stf}\ns_mov_b64 exec, -1"
    if fw < 0: a(fstore)
    for i in range(8):
        a(f"s_waitcnt vmcnt({7 - i + (1 if i > fw else 0)})")
        a(f"v_mfma_f32_16x16x32_bf16 {vr(RD,4)}, {vr(Ab(i),4)}, {vr(SEL,4)}, {'0' if i == 0 else vr(RD,4)}")
        if i == fw: a(fstore)
        if i == 0: a(f"v_xor_b32 v{MX}, s{S_TAG}, v{Ab(0)}")
        else: a(f"v_bitop3_b32 v{MX}, v{MX}, v{Ab(i)}, s{S_TAG} bitop3:0xf6")
    a(f"""
v_and_b32 v{MX}, 1, v{MX}
v_cmp_ne_u32 vcc, 0, v{MX}
s_cbranch_vccnz {L_p1r}
s_mov_b64 exec, s[{S_MLO}:{S_MLO+1}]
v_cvt_pk_bf16_f32 v{RD}, v{RD}, v{RD+1}
v_cvt_pk_bf16_f32 v{RD+1}, v{RD+2}, v{RD+3}
global_store_dwordx2 v{V_PUB}, {vr(RD,2)}, s[{S_MB}:{S_MB+1}] {stf}
global_store_dwordx2 v{V_PUB}, {vr(NEG,2)}, s[{S_MB2}:{S_MB2+1}] {stf}
s_mov_b64 exec, -1
{st(6)}
{cnt(88)}
s_mov_b32 s{S_CNT}, 0
""")
    a("s_barrier")
    if cfg.get("d2"): a(nops(cfg["d2"]))
    a(st(1))
    a(poll2)
    for x in pre[k2:] + kv_reads(): a(x)
    a(f"{L_p2c}:")
    if cfg.get("cnt") and tag == "0":
        a(f"s_cmp_eq_u32 s{S_STEP}, 3\ns_cbranch_scc0 L_m0\ns_memtime s[96:97]\ns_memrealtime s[92:93]\ns_mov_b32 s87, 0\ns_mov_b32 s88, 0\ns_mov_b32 s89, 0\nL_m0:")
    MX2 = V_T0
    a(f"""
s_waitcnt lgkmcnt(0)
{L_p2}:
s_waitcnt vmcnt(1)
ds_write_b128 v{V_POLL}, {vr(Ab(0),4)} offset:{L_MEM}
s_waitcnt vmcnt(0)
ds_write_b128 v{V_POLL}, {vr(Ab(1),4)} offset:{L_MEM+1024}
v_max3_u32 v{MX2}, v{Ab(0)}, v{Ab(0)+2}, v{Ab(1)}
v_max_u32 v{MX2}, v{MX2}, v{Ab(1)+2}
v_cmp_eq_u32 vcc, -1, v{MX2}
s_cbranch_vccnz {L_p2r}
{st(7)}
""")
    if cfg.get("dumpmem"):
        a(f"""s_lshl_b32 s{S_T}, s{S_STEP}, 13
s_add_u32 s{S_T}, s{S_T}, {WS_PART}
v_add_u32 v{V_T0}, s{S_T}, v{V_POLL}
global_store_dwordx4 v{V_T0}, {vr(Ab(0),4)}, s[{S_WS}:{S_WS+1}]
global_store_dwordx4 v{V_T0}, {vr(Ab(1),4)}, s[{S_WS}:{S_WS+1}] offset:1024
s_waitcnt vmcnt(0)""")
    if cfg.get("stamp"):
        a(f"s_cmp_eq_u32 s{S_STEP}, {cfg['stamp']}\ns_cbranch_scc0 {L_top}")
        a(f"s_waitcnt lgkmcnt(0)\ns_lshl_b32 s{S_T}, s{S_H}, 2\ns_add_u32 s{S_T}, s{S_T}, s{S_W}\ns_lshl_b32 s{S_T}, s{S_T}, 7\ns_add_u32 s{S_T}, s{S_T}, {WS_STAMP}\nv_mov_b32 v{V_T0}, s{S_T}")
        if cfg.get("rt"): a(f"s_mov_b32 s{S_ST+4}, s{S_CNT}")
        for i in range(13):
            a(f"v_mov_b32 v{A0+8}, s{S_ST+2*i}\nglobal_store_dword v{V_T0}, v{A0+8}, s[{S_WS}:{S_WS+1}] offset:{4*i}")
        a(f"s_waitcnt vmcnt(0)")
    if cfg.get("align"): a(f"s_branch {L_top}\n.p2align {cfg['align']}")
    for k in range(cfg.get("shift", 0)): a("s_nop 0")
    a(f"{L_top}:")
    Q = Seq(); G = Gaps()
    ACC = {"q": AC0, "k": AC1, "v": AC2}
    def mm(m, i, tb): return G.M(smf(ACC[m] + 4 * tb, Ab(i), m, i, tb))
    def post(ac, dst): return [f"v_add_f32 v{ac}, v{ac}, v{ac+2}", f"v_add_f32 v{ac+1}, v{ac+1}, v{ac+3}", f"v_cvt_pk_bf16_f32 v{dst}, v{ac}, v{ac+1}"]
    SX = AC0; SM = AC0 + 4; KM = AC1
    G.P(-1, st(0))
    for m, i in [("q", 0), ("q", 1), ("k", 0), ("k", 1)]:
        for tb in range(2): mm(m, i, tb)
    for m in "qk":
        for tb in range(2):
            for i in range(2, 8): mm(m, i, tb)
    for i in (0, 1, 2, 3): mm("v", i, 0)
    G.M(f"v_smfmac_f32_16x16x64_bf16 {vr(SX,4)}, {vr(KX,4)}, {vr(QT,8)}, v{V_IDX}")
    for i in (4, 5): mm("v", i, 0)
    G.M(f"v_smfmac_f32_16x16x64_bf16 {vr(SX,4)}, {vr(KX+4,4)}, {vr(QT+8,8)}, v{V_IDX}")
    for i in (6, 7): mm("v", i, 0)
    for i in (0, 1, 2, 3): mm("v", i, 1)
    G.M(f"v_smfmac_f32_16x16x64_bf16 {vr(SM,4)}, {vr(KM,4)}, {vr(QT,8)}, v{V_IDX}")
    G.M(f"v_smfmac_f32_16x16x64_bf16 {vr(SM,4)}, {vr(KM+4,4)}, {vr(QT+8,8)}, v{V_IDX}")
    for i in (4, 5, 6, 7): mm("v", i, 1)
    b1 = cfg.get("b1", 2)
    G.spreadV(0, shadow_addr())
    G.P(b1, "s_waitcnt lgkmcnt(0)", "s_barrier", st(8))
    for i in range(2, 8):
        G.D(b1 + i - 2, (f"ds_read_b128 {vr(Ab(i),4)}, v{A0+8*(i>>1)+4} offset:{L_MEM + 1024*(i&1)}", f"A{i}"))
        G.P(5 + i, WL(f"A{i}"))
    G.P(3, f"s_add_u32 s{S_KV}, s{S_KV}, {0 if cfg.get('nokvadv') else 0x80000}"); G.P(4, f"s_addc_u32 s{S_KV+1}, s{S_KV+1}, 0")
    for j, dm in enumerate([8, 11, 14, 17]): G.D(dm, kv_load(j))
    if cfg.get("sync"):
        G.P(5, f"s_cmp_lt_i32 s{S_STEP}, s{S_RDY}"); G.P(6, f"s_cbranch_scc0 L_ch_kvw{tag}", f"L_ch_kvb{tag}:")
        G.P(13, f"s_max_i32 s{S_U}, s{S_STEP}, 0"); G.V(13, f"v_mov_b32 v{V_T0}, s{S_U}")
        G.D(27, f"buffer_store_dword v{V_T0}, v{V_L16}, s[{S_FSR}:{S_FSR+3}], 0 offen sc1")
    G.D(9, (f"ds_read_b128 {vr(QT+4,4)}, v{V_KP} offset:{L_K}", "kp"))
    rk = refill("k", 2, 0) + refill("k", 3, 0) + refill("k", 2, 1) + refill("k", 3, 1)
    for x, p in zip(rk, [10, 12, 13, 15, 16, 18, 19, 20]): G.D(p, x)
    if not cfg.get("nokm"): G.D(23, f"global_store_dwordx4 v{V_KP}, {vr(QT+4,4)}, s[{S_KM}:{S_KM+1}] sc1")
    G.P(29, f"s_add_u32 s{S_KM}, s{S_KM}, 0x20000"); G.P(30, f"s_addc_u32 s{S_KM+1}, s{S_KM+1}, 0")
    G.P(14, f"s_add_u32 s{S_STEP}, s{S_STEP}, 1"); G.P(15, f"s_add_u32 s{S_GS}, s{S_GS}, 1"); G.P(16, f"s_and_b32 s{S_TAG}, s{S_GS}, 1")
    G.P(19, WL("k30")); G.P(20, st(10)); G.P(25, WL("k31"))
    for k, x in enumerate(swap(S_MB, S_MB2)): G.P(21 + k, x)
    G.spreadV(15, post(AC0, QT)); G.spreadV(18, [zero(AC0), zero(AC0 + 2)])
    G.spreadV(21, post(AC0 + 4, QT + 1)); G.spreadV(24, [zero(AC0 + 4), zero(AC0 + 6)])
    rv = refill("v", 7, 0) + refill("v", 7, 1)
    G.D(21, rv[0]); G.D(22, rv[1]); G.D(25, rv[2]); G.D(26, rv[3])
    G.D(24, (f"ds_write2_b32 v{V_QW}, v{QT}, v{QT+1} offset0:0 offset1:{QTS//4}", "qw"))
    G.P(28, WL("qw"), "s_barrier", st(11))
    for j in range(8):
        G.D(28 + j, (f"ds_read_b64_tr_b16 {vr(QT+2*j,2)}, v{V_QT} offset:{(j>>1)*2*QTS + (j&1)*32}", f"qt{j}"))
    G.V(27, zero(AC2)); G.V(29, zero(AC2 + 2)); G.V(37, zero(AC2 + 4)); G.V(38, zero(AC2 + 6))
    G.spreadV(30, post(AC1, AC1 + 2)); G.spreadV(33, post(AC1 + 4, AC1 + 3))
    G.P(35, WL("qt3")); G.P(38, WL("qt7"))
    G.D(36, (f"ds_write_b64 v{V_KW}, {vr(AC1+2,2)} offset:{L_K}", "kw"))
    b2 = cfg.get("b2", 41)
    G.P(b2, WL("kw"), "s_barrier", st(12))
    kt = [(f"ds_read_b64_tr_b16 {vr(KM+2*j,2)}, v{V_KT} offset:{(j>>1)*1024 + (j&1)*256}", f"kt{j}") for j in range(4)]
    G.D(b2, kt[0], kt[1]); G.D(b2 + 1, kt[2], kt[3])
    G.spreadD(37, refill("o", 7, 1)); G.spreadD(44, refill("o", 6, 0))
    G.V(41, f"v_add_f32 v{SX}, v{SX}, v{SX+2}"); G.V(42, f"v_add_f32 v{SX+1}, v{SX+1}, v{SX+3}")
    G.D(43, (f"ds_write_b64 v{V_SXW}, {vr(SX,2)} offset:{L_SX}", "sw"))
    G.spreadV(43, post(AC2, VM))
    G.P(45, WL("kt1")); G.P(46, WL("kt3"))
    G.P(47, WL("sw"), "s_barrier")
    X = SX
    G.D(47, (f"ds_read_b128 {vr(X,4)}, v{V_L16} offset:{L_SX}", "sx"))
    M, T, LS, T2 = A0, A0 + 1, A0 + 2, A0 + 3
    PX = A0 + 4; BM = A0 + 8; OCA = A0 + 12; OC0 = AC1
    OUT = QT; OA = A0 + 16; PK = A0
    G.V(48, zero(OUT))
    G.V(49, f"v_add_f32 v{SM}, v{SM}, v{SM+2}"); G.V(50, f"v_add_f32 v{SM+1}, v{SM+1}, v{SM+3}")
    G.P(51, WL("sx"), st(2))
    for kind, gp in cfg.get("drop", []): {"P": G.p, "D": G.m, "V": G.v}[kind].pop(gp, None)
    for k, v in cfg.get("probe", {}).items(): G.P(v, f"s_memtime s[{S_ST+2*int(k)}:{S_ST+2*int(k)+1}]")
    G.emit(Q)
    pv = post(AC2 + 4, VM + 1)
    ML = f"s[{S_MLO}:{S_MLO+1}]"
    Q.add(f"""
v_max3_f32 v{M}, v{X}, v{X+1}, v{SM}
v_max3_f32 v{T}, v{X+2}, v{X+3}, v{SM+1}
v_max_f32 v{M}, v{M}, v{T}
{zero(OUT+2)}
{zero(OUT+4)}
v_max_f32_dpp v{M}, v{M}, v{M} row_ror:8 row_mask:0xf bank_mask:0xf
v_mov_b32 v{T}, v{M}
{pv[0]}
{pv[1]}
v_permlane16_swap_b32 v{M}, v{T}
v_max_f32 v{M}, v{M}, v{T}
v_mov_b32 v{T}, v{M}
{pv[2]}
{zero(OUT+6)}
v_permlane32_swap_b32 v{M}, v{T}
v_max_f32 v{M}, v{M}, v{T}
v_mul_f32 v{M}, s{S_C}, v{M}
v_fma_f32 v{SM}, v{SM}, s{S_C}, -v{M}
v_fma_f32 v{SM+1}, v{SM+1}, s{S_C}, -v{M}
v_exp_f32 v{SM}, v{SM}
v_exp_f32 v{SM+1}, v{SM+1}
v_fma_f32 v{X}, v{X}, s{S_C}, -v{M}
v_cvt_pk_bf16_f32 v{T}, v{SM}, v{SM+1}
v_fma_f32 v{X+1}, v{X+1}, s{S_C}, -v{M}
v_cndmask_b32 v{BM}, 0, v{T}, {ML}
v_cndmask_b32 v{BM+1}, v{T}, 0, {ML}
v_fma_f32 v{X+2}, v{X+2}, s{S_C}, -v{M}
v_fma_f32 v{X+3}, v{X+3}, s{S_C}, -v{M}
v_mfma_f32_16x16x16_bf16 {vr(OC0,4)}, {vr(VM,2)}, {vr(BM,2)}, 0
v_exp_f32 v{X}, v{X}
v_exp_f32 v{X+1}, v{X+1}
v_exp_f32 v{X+2}, v{X+2}
v_exp_f32 v{X+3}, v{X+3}
v_cvt_pk_bf16_f32 v{PX}, v{X}, v{X+1}
v_cvt_pk_bf16_f32 v{PX+1}, v{X+2}, v{X+3}
v_add_f32 v{T}, v{SM}, v{SM+1}
v_mov_b32_dpp v{PX+2}, v{PX} row_ror:8 row_mask:0xf bank_mask:0xf
v_mov_b32_dpp v{PX+3}, v{PX+1} row_ror:8 row_mask:0xf bank_mask:0xf
v_add_f32 v{LS}, v{X}, v{X+1}
v_add_f32 v{T2}, v{X+2}, v{X+3}
v_mfma_f32_16x16x32_bf16 {vr(OCA,4)}, {vr(VX,4)}, {vr(PX,4)}, {vr(OC0,4)}
v_fma_f32 v{LS}, v{T}, 0.5, v{LS}
v_add_f32 v{LS}, v{LS}, v{T2}
v_mfma_f32_16x16x32_bf16 {vr(OC0,4)}, {vr(VX+4,4)}, {vr(PX,4)}, {vr(OC0,4)}
{zero(OUT+8)}
v_add_f32_dpp v{LS}, v{LS}, v{LS} row_ror:8 row_mask:0xf bank_mask:0xf
v_mov_b32 v{T}, v{LS}
{zero(OUT+10)}
{zero(OUT+12)}
v_permlane16_swap_b32 v{LS}, v{T}
v_add_f32 v{LS}, v{LS}, v{T}
v_mov_b32 v{T}, v{LS}
v_cndmask_b32 v{OC0}, v{OC0}, v{OCA}, {ML}
v_cndmask_b32 v{OC0+1}, v{OC0+1}, v{OCA+1}, {ML}
v_permlane32_swap_b32 v{LS}, v{T}
v_add_f32 v{LS}, v{LS}, v{T}
v_rcp_f32 v{LS}, v{LS}
v_cndmask_b32 v{OC0+2}, v{OC0+2}, v{OCA+2}, {ML}
v_cndmask_b32 v{OC0+3}, v{OC0+3}, v{OCA+3}, {ML}
v_pk_mul_f32 {vr(OC0,2)}, {vr(OC0,2)}, {vr(LS,2)} op_sel_hi:[1,0]
v_pk_mul_f32 {vr(OC0+2,2)}, {vr(OC0+2,2)}, {vr(LS,2)} op_sel_hi:[1,0]
v_cvt_pk_bf16_f32 v{OC0}, v{OC0}, v{OC0+1}
v_cvt_pk_bf16_f32 v{OC0+1}, v{OC0+2}, v{OC0+3}
ds_write_b64 v{V_OW}, {vr(OC0,2)} offset:{L_O}
{st(9)}
s_cmp_eq_u32 s{S_STEP}, 63
s_cbranch_scc1 {L_last}
{zero(OUT+14)}
s_waitcnt lgkmcnt(0)
s_barrier
""")
    for k in range(4): Q.add((f"ds_read_b128 {vr(OA+4*k,4)}, v{V_OR} offset:{L_O+512*k}", f"oa{k}"))
    Q.add(st(3))
    G = Gaps()
    for c in range(4):
        for k in range(4): G.M(smf(OUT + 4 * c, OA + 4 * k, "o", 2 * c + (k >> 1), k & 1))
    for k in range(4): G.P(k - 1, WL(f"oa{k}"))
    G.spreadD(0, refill("o", 5, 0) + refill("o", 5, 1) + refill("o", 6, 1) + refill("o", 7, 0))
    G.P(9, WL("o51"))
    G.D(8, f"ds_write_b64 v{V_KW}, {vr(VM,2)} offset:{L_V}")
    G.D(9, f"ds_read_b128 {vr(SEL,4)}, v{V_L16} offset:{L_CT}")
    G.P(11, WL("o70"))
    cv = lambda c: [f"v_cvt_pk_bf16_f32 v{PK+2*c+j}, v{OUT+4*c+2*j}, v{OUT+4*c+2*j+1}" for j in range(2)]
    for c in range(3): G.spreadV(4 * c + 5, cv(c))
    G.V(7, f"v_and_or_b32 v{PK}, v{PK}, -2, s{S_TAG}"); G.V(15, f"v_and_or_b32 v{PK+4}, v{PK+4}, -2, s{S_TAG}")
    G.D(11, f"global_store_dwordx4 v{V_ST0}, {vr(PK,4)}, s[{S_IBW}:{S_IBW+1}] {stf}")
    G.P(15, f"s_cmp_lg_u32 s{S_W}, 0")
    G.V(15, cv(3))
    G.emit(Q)
    Q.add(f"global_store_dwordx4 v{V_ST0}, {vr(PK+4,4)}, s[{S_IBW2}:{S_IBW2+1}] {stf}")
    Q.add(st(4))
    for x in Q.resolve(): a(x)
    a(f"s_cbranch_scc1 {L_nr}\ns_branch {L_comm}")
    a(f"{L_last}:")
    a(f"""ds_write_b64 v{V_KW}, {vr(VM,2)} offset:{L_V}
s_waitcnt lgkmcnt(0)
s_barrier
ds_read_b128 {vr(QT+4,4)}, v{V_KP} offset:{L_K}
s_waitcnt lgkmcnt(0)
global_store_dwordx4 v{V_KP}, {vr(QT+4,4)}, s[{S_KM}:{S_KM+1}] sc1""")
    for x in swap(S_MB, S_MB2): a(x)
    a(f"s_sub_u32 s{S_GS}, s{S_GS}, 1\ns_waitcnt vmcnt(0) lgkmcnt(0)")
    if cfg.get("sync"): a(f"v_mov_b32 v{V_T0}, 64\nbuffer_store_dword v{V_T0}, v{V_L16}, s[{S_FSR}:{S_FSR+3}], 0 offen sc1")
    a("s_barrier")
```

```python
MB = 1 << 20
WS_FLAGS  = 0
WS_MEMB   = 0x10000
WS_STAMP  = 0x20000
WS_INBOX  = 0x40000
WS_STATS  = 0x80000
WS_XA     = 2 * MB
WS_XB     = 6 * MB
WS_Z      = 8 * MB
WS_ZP     = 12 * MB
WS_KM     = 24 * MB
WS_KV     = 48 * MB
WS_QX     = 112 * MB
WS_PART   = 144 * MB
FL_LAYER = 0x8000
FL_T1 = 0x0000
FL_T2 = 0x0400
FL_T3 = 0x0800
FL_HD = 0x1000
FL_T5 = 0x2000
FL_R2 = 0x4000
KA_X, KA_WR, KA_WI, KA_BX, KA_MEM0, KA_WQ, KA_WK, KA_WV, KA_WO, KA_SEG, KA_OUT, KA_DBG, KA_WS = [8 * i for i in range(13)]
```

```python
from wcommon import *
FR = 128
ONES = 0x3f803f80

def fconst(x):
    import struct
    return hex(struct.unpack("<I", struct.pack("<f", x))[0])

def gen_FT(a, sq):
    st, ba, t0, t1 = 2, 3, 4, 5
    a(f"""s_lshl_b32 s{S_T}, s{sq}, 7
s_lshl_b32 s{S_T+1}, s{S_W}, 5
s_add_u32 s{S_T}, s{S_T}, s{S_T+1}
v_and_b32 v{t0}, 31, v{V_L}
v_add_u32 v{t0}, s{S_T}, v{t0}
v_lshrrev_b32 v{st}, 1, v{t0}
v_and_b32 v{t1}, 1, v{t0}
v_cmp_eq_u32 vcc, 1, v{t0}
v_mov_b32 v{ba}, 0x100
v_cndmask_b32 v{st}, v{st}, v{ba}, vcc
v_cndmask_b32 v{t1}, v{t1}, 0, vcc
v_cvt_f32_u32 v{st}, v{st}
v_mul_f32 v{st}, 0x3b000000, v{st}
v_cvt_f32_u32 v{t1}, v{t1}
v_mul_f32 v{t1}, 0x3e800000, v{t1}
v_lshrrev_b32 v{ba}, 5, v{V_L}
v_lshlrev_b32 v{ba}, 3, v{ba}
v_cvt_f32_u32 v{ba}, v{ba}
v_fma_f32 v{ba}, v{ba}, v{st}, v{t1}
v_fract_f32 v{ba}, v{ba}
""")
    for ks in range(32):
        for e in range(8):
            if e == 0: a(f"v_cos_f32 v8, v{ba}")
            else: a(f"v_fmamk_f32 v{8+e}, v{st}, {fconst(e)}, v{ba}\nv_cos_f32 v{8+e}, v{8+e}")
        if ks < 31: a(f"v_fmamk_f32 v{ba}, v{st}, {fconst(16)}, v{ba}\nv_fract_f32 v{ba}, v{ba}")
        for p in range(4): a(f"v_cvt_pk_bf16_f32 v{FR+4*ks+p}, v{8+2*p}, v{9+2*p}")

def gen_FI(a, sq):
    st, ba, t0, t1 = 2, 3, 4, 5
    a(f"""s_lshl_b32 s{S_T}, s{sq}, 7
s_lshl_b32 s{S_T+1}, s{S_W}, 5
s_add_u32 s{S_T}, s{S_T}, s{S_T+1}
v_and_b32 v{t0}, 0x13, v{V_L}
v_bfe_u32 v{t1}, v{V_L}, 2, 1
v_lshl_add_u32 v{t0}, v{t1}, 3, v{t0}
v_bfe_u32 v{t1}, v{V_L}, 3, 1
v_lshl_add_u32 v{t0}, v{t1}, 2, v{t0}
v_add_u32 v{t0}, s{S_T}, v{t0}
v_cvt_f32_u32 v{st}, v{t0}
v_mul_f32 v{st}, 0x3b000000, v{st}
v_lshrrev_b32 v{ba}, 5, v{V_L}
v_lshlrev_b32 v{ba}, 2, v{ba}
v_cvt_f32_u32 v{ba}, v{ba}
v_mul_f32 v{ba}, v{ba}, v{st}
v_fract_f32 v{ba}, v{ba}
v_lshlrev_b32 v{t0}, 31, v{t0}
v_or_b32 v{t0}, 0x3f803f80, v{t0}
""")
    for ks in range(32):
        for p in range(4):
            if p == 0: a(f"v_cos_f32 v8, v{ba}\nv_sin_f32 v9, -v{ba}")
            else: a(f"v_fmamk_f32 v{9+2*p}, v{st}, {fconst(p)}, v{ba}\nv_cos_f32 v{8+2*p}, v{9+2*p}\nv_sin_f32 v{9+2*p}, -v{9+2*p}")
        if ks < 31: a(f"v_fmamk_f32 v{ba}, v{st}, {fconst(8)}, v{ba}\nv_fract_f32 v{ba}, v{ba}")
        for p in range(4): a(f"v_cvt_pk_bf16_f32 v{FR+4*ks+p}, v{8+2*p}, v{9+2*p}")
    a(f"v_cmp_gt_u32 vcc, 32, v{V_L}\nv_cndmask_b32 v{FR}, v{FR}, v{t0}, vcc")

L_X, L_P, L_R, L_O = 0x0000, 0x8000, 0x8800, 0x9000

def dma_rows(a, sbase, rowmajor):
    va = 2
    if rowmajor:
        a(f"""v_and_b32 v{va}, 31, v{V_L}
v_lshlrev_b32 v{va}, 10, v{va}
v_lshrrev_b32 v3, 5, v{V_L}
v_lshl_add_u32 v{va}, v3, 4, v{va}
s_lshl_b32 s{S_T}, s{S_W}, 8
v_add_u32 v{va}, s{S_T}, v{va}""")
        step = 32
    else:
        a(f"s_lshl_b32 s{S_T}, s{S_W}, 13\nv_add_u32 v{va}, s{S_T}, v{V_L16}")
        step = 1024
    a(f"s_lshl_b32 s{S_T}, s{S_W}, 13")
    for k in range(8):
        a(f"s_add_u32 m0, s{S_T}, {L_X + k*1024}")
        if k: a(f"v_add_u32 v{va}, {step}, v{va}")
        a(f"global_load_lds_dwordx4 v{va}, s[{sbase}:{sbase+1}]{'' if rowmajor else ' sc1'}")

def t1_issue(a, layer):
    if layer == 0:
        a(f"s_load_dwordx2 s[{S_P}:{S_P+1}], s[0:1], {KA_X}\ns_lshl_b32 s{S_T+2}, s{S_SEG}, 15\ns_waitcnt lgkmcnt(0)\n{add64(S_P, S_P, f's{S_T+2}')}")
    else:
        a(f"s_lshl_b32 s{S_T+2}, s{S_SEG}, 15\ns_add_u32 s{S_T+2}, s{S_T+2}, {WS_XB}\n{add64(S_P, S_WS, f's{S_T+2}')}")
    dma_rows(a, S_P, layer == 0)

def t1_compute(a, layer, sq, vm_after=0):
    ACC, FB, RR, RM = 16, 32, 64, 80
    a(f"""s_lshl_b32 s{S_T}, s{S_W}, 13
v_add_u32 v2, s{S_T}, v{V_L16}
s_waitcnt vmcnt({vm_after})""")
    for k in range(8): a(f"ds_read_b128 {vr(FB+4*k,4)}, v2 offset:{L_X + k*1024}")
    a(f"v_mov_b64 v[4:5], 0\nv_mov_b64 v[6:7], 0\ns_mov_b32 s{S_T+1}, {hex(ONES)}")
    for k in range(8):
        a(f"s_waitcnt lgkmcnt({7-k})")
        for j in range(4):
            r = FB + 4 * k + j
            a(f"v_dot2_f32_bf16 v{4+2*(j&1)}, v{r}, s{S_T+1}, v{4+2*(j&1)}\nv_dot2_f32_bf16 v{5+2*(j&1)}, v{r}, v{r}, v{5+2*(j&1)}")
    a(f"""s_nop 2
v_add_f32 v4, v4, v6
v_add_f32 v5, v5, v7
s_lshl_b32 s{S_T}, s{S_W}, 9
v_lshl_add_u32 v3, v{V_L}, 3, s{S_T}
ds_write_b64 v3, v[4:5] offset:{L_P}
s_waitcnt lgkmcnt(0)
s_barrier
v_and_b32 v3, 31, v{V_L}
v_lshlrev_b32 v3, 3, v3""")
    for k in range(8): a(f"ds_read_b64 {vr(RR+2*k,2)}, v3 offset:{L_P + 256*k}")
    for k in range(7): a(f"ds_read_b128 {vr(FB+4*k,4)}, v{V_L16} offset:{L_X + k*1024}")
    a("s_waitcnt lgkmcnt(7)")
    for k in (4, 2, 1):
        for i in range(k):
            a(f"v_add_f32 v{RR+2*i}, v{RR+2*i}, v{RR+2*(i+k)}\nv_add_f32 v{RR+2*i+1}, v{RR+2*i+1}, v{RR+2*(i+k)+1}")
    ln_stats(a, RR, RR + 1, 4, 5, 6)
    a(f"""v_mul_f32 v4, v4, v5
s_lshl_b32 s{S_T}, s{S_W}, 8
v_lshrrev_b32 v3, 1, v3
v_add_u32 v3, s{S_T}, v3
v_lshrrev_b32 v6, 5, v{V_L}
v_lshl_add_u32 v6, v6, 4, s{S_T}""")
    Q = Seq()
    for k in range(7): Q.items.append(("PL", f"f{k}"))
    for ks in range(32):
        if ks + 7 < 32: Q.add((f"ds_read_b128 {vr(FB+4*((ks+7)%8),4)}, v{V_L16} offset:{L_X + (ks+7)*1024}", f"f{ks+7}"))
        Q.add(WL(f"f{ks}"))
        Q.add(f"v_mfma_f32_32x32x16_bf16 {vr(ACC,16)}, {vr(FB+4*(ks%8),4)}, {vr(FR+4*ks,4)}, {'0' if ks == 0 else vr(ACC,16)}")
        if ks == 24: Q.add(f"ds_write2_b32 v3, v5, v4 offset0:0 offset1:32")
        if ks in (26, 27, 28, 29):
            q = ks - 26
            Q.add(f"ds_read_b128 {vr(RR+4*q,4)}, v6 offset:{L_R + 32*q}\nds_read_b128 {vr(RM+4*q,4)}, v6 offset:{L_R + 128 + 32*q}")
    a(f"v_add_u32 v3, {L_R}, v3")
    for x in Q.resolve(): a(x)
    a(f"""s_or_b32 s{S_T}, s{sq}, s{S_W}
v_and_b32 v4, 31, v{V_L}
v_or_b32 v5, s{S_T}, v4
v_cmp_eq_u32 vcc, 0, v5
v_mov_b32 v5, 0x44000000
v_cndmask_b32 v5, 0, v5, vcc
s_lshl_b32 s{S_T}, s{S_W}, 11
s_add_u32 s{S_T}, s{S_T}, {L_O}
v_lshlrev_b32 v4, 6, v4
v_lshrrev_b32 v6, 5, v{V_L}
v_lshl_add_u32 v4, v6, 3, v4
v_add_u32 v4, s{S_T}, v4
v_add_u32 v6, s{S_T}, v{V_L16}
s_waitcnt lgkmcnt(0)""")
    for i in range(16): a(f"v_mul_f32 v{RM+i}, v{RM+i}, v5")
    for i in range(16): a(f"v_fma_f32 v{ACC+i}, v{ACC+i}, v{RR+i}, -v{RM+i}")
    for i in range(8): a(f"v_cvt_pk_bf16_f32 v{FB+i}, v{ACC+2*i}, v{ACC+2*i+1}")
    for q in range(4): a(f"ds_write_b64 v4, {vr(FB+2*q,2)} offset:{16*q}")
    a(f"""s_lshl_b32 s{S_T}, s{S_SEG}, 15
s_lshl_b32 s{S_T+1}, s{sq}, 13
s_add_u32 s{S_T}, s{S_T}, s{S_T+1}
s_lshl_b32 s{S_T+1}, s{S_W}, 11
s_add_u32 s{S_T}, s{S_T}, s{S_T+1}
s_add_u32 s{S_T}, s{S_T}, {WS_Z + layer*2*MB}
{add64(S_P+2, S_WS, f's{S_T}')}
s_waitcnt lgkmcnt(0)
ds_read_b128 {vr(FB+8,4)}, v6
ds_read_b128 {vr(FB+12,4)}, v6 offset:1024
s_waitcnt lgkmcnt(1)
global_store_dwordx4 v{V_L16}, {vr(FB+8,4)}, s[{S_P+2}:{S_P+3}] sc1
s_waitcnt lgkmcnt(0)
global_store_dwordx4 v{V_L16}, {vr(FB+12,4)}, s[{S_P+2}:{S_P+3}] offset:1024 sc1
s_waitcnt vmcnt(0)
s_barrier""")
    L = a.label("L_t1f")
    a(f"s_cmp_lg_u32 s{S_W}, 0\ns_cbranch_scc1 {L}")
    start_barrier_wait(a, 2, 3)
    a(f"s_lshl_b32 s{S_T}, s{S_SEG}, 2\ns_add_u32 s{S_T}, s{S_T}, s{sq}\ns_lshl_b32 s{S_T}, s{S_T}, 2\ns_add_u32 s{S_T}, s{S_T}, {FL_T1}")
    set_flag(a, S_T, 1, 2, 3)
    a(f"{L}:")

def t3_resid(a, layer, sq):
    a(f"s_lshl_b32 s{S_T+1}, s{sq}, 2\ns_add_u32 s{S_T+1}, s{S_T+1}, s{S_W}\ns_lshl_b32 s{S_T+2}, s{S_SEG}, 15")
    if layer == 0:
        a(f"""s_load_dwordx2 s[{S_P}:{S_P+1}], s[0:1], {KA_X}
s_lshl_b32 s{S_T+1}, s{S_T+1}, 6
s_add_u32 s{S_T+2}, s{S_T+2}, s{S_T+1}
v_and_b32 v2, 31, v{V_L}
v_lshlrev_b32 v2, 10, v2
v_lshrrev_b32 v3, 5, v{V_L}
v_lshl_add_u32 v2, v3, 4, v2
s_waitcnt lgkmcnt(0)
{add64(S_P, S_P, f's{S_T+2}')}
global_load_dwordx4 v[8:11], v2, s[{S_P}:{S_P+1}]
global_load_dwordx4 v[12:15], v2, s[{S_P}:{S_P+1}] offset:32""")
    else:
        a(f"""s_lshl_b32 s{S_T+1}, s{S_T+1}, 11
s_add_u32 s{S_T+2}, s{S_T+2}, s{S_T+1}
s_add_u32 s{S_T+2}, s{S_T+2}, {WS_XB}
{add64(S_P, S_WS, f's{S_T+2}')}
global_load_dwordx4 v[8:11], v{V_L16}, s[{S_P}:{S_P+1}] sc1
global_load_dwordx4 v[12:15], v{V_L16}, s[{S_P}:{S_P+1}] offset:1024 sc1""")

def t3_task(a, layer, sq):
    ACC, FB = 16, 32
    a(f"s_lshl_b32 s{S_T+2}, s{S_SEG}, 15\ns_add_u32 s{S_T+2}, s{S_T+2}, {WS_ZP + layer*2*MB}\n{add64(S_P+2, S_WS, f's{S_T+2}')}")
    dma_rows(a, S_P + 2, False)
    t3_resid(a, layer, sq)
    a(f"""v_lshrrev_b32 v4, 5, v{V_L}
v_lshlrev_b32 v4, 3, v4
v_bfe_u32 v5, v{V_L}, 2, 2
v_add_u32 v4, v4, v5
v_lshlrev_b32 v4, 6, v4
v_bfe_u32 v5, v{V_L}, 4, 1
v_lshl_add_u32 v4, v5, 5, v4
v_and_b32 v5, 3, v{V_L}
v_lshl_add_u32 v4, v5, 3, v4
s_waitcnt vmcnt(2)
s_barrier""")
    Q = Seq()
    def rd(ks): return [(f"ds_read_b64_tr_b16 {vr(FB+4*(ks%8)+2*pp,2)}, v4 offset:{L_X + ks*1024 + pp*256}", f"f{ks}") for pp in range(2)]
    for k in range(6): Q.add(rd(k))
    for ks in range(32):
        if ks + 6 < 32: Q.add(rd(ks + 6))
        Q.add(WL(f"f{ks}"))
        Q.add(f"v_mfma_f32_32x32x16_bf16 {vr(ACC,16)}, {vr(FR+4*ks,4)}, {vr(FB+4*(ks%8),4)}, {'0' if ks == 0 else vr(ACC,16)}")
    for x in Q.resolve(): a(x)
    a(f"""s_lshl_b32 s{S_T+1}, s{sq}, 2
s_add_u32 s{S_T+1}, s{S_T+1}, s{S_W}
s_lshl_b32 s{S_T+1}, s{S_T+1}, 11
s_lshl_b32 s{S_T+2}, s{S_SEG}, 15
s_add_u32 s{S_T+2}, s{S_T+2}, s{S_T+1}
s_add_u32 s{S_T+2}, s{S_T+2}, {WS_XA + layer*2*MB}
{add64(S_P+2, S_WS, f's{S_T+2}')}
s_mov_b32 s{S_T+1}, {hex(ONES)}
s_mov_b32 s{S_T+3}, 0xffff0000
v_mov_b64 v[4:5], 0
v_mov_b64 v[6:7], 0
s_waitcnt vmcnt(0)""")
    for i in range(8):
        a(f"v_lshlrev_b32 v{FB+2*i}, 16, v{8+i}\nv_and_b32 v{FB+2*i+1}, s{S_T+3}, v{8+i}")
    for i in range(8): a(f"v_cvt_pk_bf16_f32 v{8+i}, v{ACC+2*i}, v{ACC+2*i+1}")
    for i in range(8):
        a(f"v_lshlrev_b32 v{ACC+2*i}, 16, v{8+i}\nv_and_b32 v{ACC+2*i+1}, s{S_T+3}, v{8+i}")
    for i in range(8): a(f"v_pk_add_f32 {vr(ACC+2*i,2)}, {vr(ACC+2*i,2)}, {vr(FB+2*i,2)}")
    for i in range(8): a(f"v_cvt_pk_bf16_f32 v{8+i}, v{ACC+2*i}, v{ACC+2*i+1}")
    a(f"""global_store_dwordx4 v{V_L16}, v[8:11], s[{S_P+2}:{S_P+3}] sc1
global_store_dwordx4 v{V_L16}, v[12:15], s[{S_P+2}:{S_P+3}] offset:1024 sc1""")
    for i in range(8):
        a(f"v_dot2_f32_bf16 v{4+2*(i&1)}, v{8+i}, s{S_T+1}, v{4+2*(i&1)}\nv_dot2_f32_bf16 v{5+2*(i&1)}, v{8+i}, v{8+i}, v{5+2*(i&1)}")
    L = a.label("L_t3f")
    a(f"""s_nop 2
v_add_f32 v4, v4, v6
v_add_f32 v5, v5, v7
s_lshl_b32 s{S_T}, s{S_W}, 9
v_lshl_add_u32 v3, v{V_L}, 3, s{S_T}
ds_write_b64 v3, v[4:5] offset:{L_P}
s_waitcnt lgkmcnt(0)
s_barrier
s_cmp_lg_u32 s{S_W}, 0
s_cbranch_scc1 {L}
v_and_b32 v3, 31, v{V_L}
v_lshlrev_b32 v3, 3, v3""")
    for k in range(8): a(f"ds_read_b64 {vr(FB+2*k,2)}, v3 offset:{L_P + 256*k}")
    a(f"""s_lshl_b32 s{S_T}, s{S_SEG}, 2
s_add_u32 s{S_T}, s{S_T}, s{sq}
s_lshl_b32 s{S_T+1}, s{S_T}, 8
s_add_u32 s{S_T+1}, s{S_T+1}, {WS_STATS + layer*0x10000}
{add64(S_P+2, S_WS, f's{S_T+1}')}
s_waitcnt lgkmcnt(0)""")
    for k in (4, 2, 1):
        for i in range(k): a(f"v_pk_add_f32 {vr(FB+2*i,2)}, {vr(FB+2*i,2)}, {vr(FB+2*(i+k),2)}")
    a(f"""s_mov_b32 exec_hi, 0
global_store_dwordx2 v3, {vr(FB,2)}, s[{S_P+2}:{S_P+3}] sc1
s_mov_b32 exec_hi, -1
{L}:
s_waitcnt vmcnt(0)
s_barrier""")
    L = a.label("L_t3g")
    a(f"s_cmp_lg_u32 s{S_W}, 0\ns_cbranch_scc1 {L}\ns_lshl_b32 s{S_T}, s{S_T}, 2\ns_add_u32 s{S_T}, s{S_T}, {FL_T3}")
    set_flag(a, S_T, 1, 2, 3)
    a(f"{L}:")
```

```python
from wcommon import *
from t13 import fconst
C64, S64, N64 = 128, 144, 160
C32, S32, N32 = 176, 184, 192
WF = 200
TF = 64
TI = 96
S_J, S_WCOL, S_IMM, S_SC, S_RO, S_U = 40, 41, 42, 43, 44, 45
L_IN, L_EX = 0x0000, 0x4000
pat = lambda rho: (rho & 3) + 8 * (rho >> 2)

def params(a, stask):
    a(f"""s_lshr_b32 s{S_T}, s{S_W}, 1
s_and_b32 s{S_U}, s{S_W}, 1
s_lshl_b32 s{S_J}, s{stask}, 1
s_add_u32 s{S_J}, s{S_J}, s{S_T}
s_add_u32 s{S_J}, s{S_J}, 1
s_min_u32 s{S_J}, s{S_J}, 255
s_lshl_b32 s{S_T+1}, s{S_T}, 8
s_lshl_b32 s{S_T+2}, s{S_T}, 6
s_cmp_eq_u32 s{stask}, 128
s_cselect_b32 s{S_WCOL}, s{S_T+1}, s{S_J}
s_cselect_b32 s{S_J}, 0, s{S_J}
s_cselect_b32 s{S_IMM}, 0, -1
s_cselect_b32 s{S_RO}, s{S_T+2}, 0
s_mov_b32 s{S_SC}, {fconst(2.0**-19)}
s_cselect_b32 s{S_SC}, {fconst(2.0**-20)}, s{S_SC}""")

def issue_w(a):
    a(f"""s_load_dwordx2 s[{S_P}:{S_P+1}], s[0:1], {KA_WR}
s_load_dwordx2 s[{S_P+2}:{S_P+3}], s[0:1], {KA_WI}
v_and_b32 v2, 31, v{V_L}
s_lshl_b32 s{S_T}, s{S_U}, 5
v_add_u32 v2, s{S_T}, v2
v_lshrrev_b32 v3, 5, v{V_L}
v_lshl_add_u32 v2, v3, 8, v2
v_mul_u32_u24 v2, 514, v2
s_lshl_b32 s{S_T}, s{S_WCOL}, 1
v_add_u32 v2, s{S_T}, v2
s_waitcnt lgkmcnt(0)""")
    for rho in range(16):
        a(f"v_add_u32 v3, {pat(rho)*64*514}, v2")
        a(f"global_load_ushort v{WF+rho}, v3, s[{S_P}:{S_P+1}]\nglobal_load_ushort v{WF+16+rho}, v3, s[{S_P+2}:{S_P+3}]")

def gen_consts(a):
    st, ba = 2, 3
    def table(C, S, N, nks, scale, withu):
        a(f"v_and_b32 v{st}, 31, v{V_L}")
        if withu: a(f"s_lshl_b32 s{S_T}, s{S_U}, 5\nv_add_u32 v{st}, s{S_T}, v{st}")
        a(f"""v_cvt_f32_u32 v{st}, v{st}
v_mul_f32 v{st}, {fconst(scale)}, v{st}
v_lshrrev_b32 v{ba}, 5, v{V_L}
v_lshlrev_b32 v{ba}, 2, v{ba}
v_cvt_f32_u32 v{ba}, v{ba}
v_mul_f32 v{ba}, v{ba}, v{st}""")
        for ks in range(nks):
            for e in range(8):
                y = 16 * ks + pat(e)
                a(f"v_fmamk_f32 v{16+e}, v{st}, {fconst(y)}, v{ba}\nv_fract_f32 v{16+e}, v{16+e}\nv_cos_f32 v{8+e}, v{16+e}\nv_sin_f32 v{16+e}, v{16+e}")
            for p in range(4):
                a(f"v_cvt_pk_bf16_f32 v{C+4*ks+p}, v{8+2*p}, v{9+2*p}\nv_cvt_pk_bf16_f32 v{S+4*ks+p}, v{16+2*p}, v{17+2*p}\nv_xor_b32 v{N+4*ks+p}, 0x80008000, v{S+4*ks+p}")
    table(C64, S64, N64, 4, 1.0 / 64, True)
    table(C32, S32, N32, 2, 1.0 / 32, False)
    a(f"""v_and_b32 v{st}, 31, v{V_L}
s_lshl_b32 s{S_T}, s{S_U}, 5
v_add_u32 v{st}, s{S_T}, v{st}
v_cvt_f32_u32 v{st}, v{st}
v_mul_f32 v{st}, {fconst(1.0/2048)}, v{st}
v_lshrrev_b32 v{ba}, 5, v{V_L}
v_lshlrev_b32 v{ba}, 2, v{ba}
v_cvt_f32_u32 v{ba}, v{ba}
v_mul_f32 v{ba}, v{ba}, v{st}""")
    for rho in range(16):
        a(f"v_fmamk_f32 v{TF+16+rho}, v{st}, {fconst(pat(rho))}, v{ba}\nv_cos_f32 v{TF+rho}, v{TF+16+rho}\nv_sin_f32 v{TF+16+rho}, v{TF+16+rho}")
    a(f"""v_and_b32 v{st}, 31, v{V_L}
v_cvt_f32_u32 v{st}, v{st}
v_mul_f32 v{st}, {fconst(1.0/2048)}, v{st}
v_lshrrev_b32 v{ba}, 5, v{V_L}
v_lshlrev_b32 v{ba}, 2, v{ba}
v_add_u32 v{ba}, s{S_T}, v{ba}
v_cvt_f32_u32 v{ba}, v{ba}
v_mul_f32 v{ba}, v{ba}, v{st}""")
    for rho in range(16):
        a(f"v_fmamk_f32 v{TI+16+rho}, v{st}, {fconst(pat(rho))}, v{ba}\nv_cos_f32 v{TI+rho}, v{TI+16+rho}\nv_sin_f32 v{TI+16+rho}, v{TI+16+rho}")

def finish_w(a):
    for i in range(32): a(f"v_lshlrev_b32 v{WF+i}, 16, v{WF+i}\nv_mul_f32 v{WF+i}, s{S_SC}, v{WF+i}")

def run(a, layer, stask):
    DR, DI = 16, 32
    XR, XI = 232, 48
    TT = 248
    va = 2
    a(f"""v_lshrrev_b32 v{va}, 3, v{V_L}
s_lshl_b32 s{S_T}, s{S_U}, 5
v_add_u32 v{va}, s{S_T}, v{va}
v_lshlrev_b32 v{va}, 15, v{va}
v_and_b32 v3, 7, v{V_L}
v_lshl_add_u32 v{va}, v3, 4, v{va}
s_lshl_b32 s{S_T}, s{S_J}, 7
v_add_u32 v{va}, s{S_T}, v{va}
{add64(S_P, S_WS, WS_Z + layer*2*MB)}
{add64(S_P+2, S_WS, WS_ZP + layer*2*MB)}
s_lshl_b32 s{S_T+1}, s{S_W}, 12
v_mov_b32 v3, v{va}""")
    for i in range(4):
        a(f"s_add_u32 m0, s{S_T+1}, {L_IN + i*1024}")
        if i: a(f"v_add_u32 v3, 0x40000, v3")
        a(f"global_load_lds_dwordx4 v3, s[{S_P}:{S_P+1}] sc1")
    a(f"""s_lshr_b32 s{S_T}, s{S_W}, 1
s_lshl_b32 s{S_T}, s{S_T}, 13
v_lshrrev_b32 v4, 5, v{V_L}
v_lshlrev_b32 v4, 2, v4
v_bfe_u32 v5, v{V_L}, 2, 2
v_add_u32 v4, v4, v5
v_lshlrev_b32 v4, 7, v4
v_bfe_u32 v5, v{V_L}, 4, 1
v_lshl_add_u32 v4, v5, 5, v4
v_and_b32 v5, 3, v{V_L}
v_lshl_add_u32 v4, v5, 3, v4
v_add_u32 v4, s{S_T}, v4
v_add_u32 v5, s{S_RO}, v4
v_add_u32 v6, s{S_T}, v{V_L16}
s_lshl_b32 s{S_T+2}, s{S_U}, 11
v_add_u32 v7, s{S_T+2}, v6
s_waitcnt vmcnt(0)
s_barrier""")
    for ks in range(4):
        for pp in range(2): a(f"ds_read_b64_tr_b16 {vr(XR+4*ks+2*pp,2)}, v5 offset:{L_IN + (16*ks+8*pp)*128}")
    a("s_waitcnt lgkmcnt(4)")
    for ks in range(4):
        for pp in range(2): a(f"ds_read_b64_tr_b16 {vr(XI+4*ks+2*pp,2)}, v4 offset:{L_IN + (16*ks+8*pp)*128 + 64}")
    def mm(d, x, y, first): return f"v_mfma_f32_32x32x16_bf16 {vr(d,16)}, {vr(x,4)}, {vr(y,4)}, {'0' if first else vr(d,16)}"
    def cstage(n, dataA, C, SR, SI):
        o = (lambda d, x, c, f: mm(d, x, c, f)) if dataA else (lambda d, x, c, f: mm(d, c, x, f))
        for ks in range(n): a(o(DR, XR + 4 * ks, C + 4 * ks, ks == 0)); a(o(DI, XR + 4 * ks, SI + 4 * ks, ks == 0))
        return [x for ks in range(n) for x in (o(DR, XI + 4 * ks, SR + 4 * ks, False), o(DI, XI + 4 * ks, C + 4 * ks, False))]
    def cmul_pack(cr, ci, conj):
        for i in range(16):
            t = 248 + (i & 7)
            if conj: a(f"v_mul_f32 v{t}, v{DI+i}, v{ci(i)}\nv_mul_f32 v{DI+i}, v{DI+i}, v{cr(i)}\nv_fma_f32 v{DI+i}, -v{DR+i}, v{ci(i)}, v{DI+i}\nv_fma_f32 v{DR+i}, v{DR+i}, v{cr(i)}, v{t}")
            else: a(f"v_mul_f32 v{t}, v{DI+i}, v{ci(i)}\nv_mul_f32 v{DI+i}, v{DI+i}, v{cr(i)}\nv_fma_f32 v{DI+i}, v{DR+i}, v{ci(i)}, v{DI+i}\nv_fma_f32 v{DR+i}, v{DR+i}, v{cr(i)}, -v{t}")
        for i in range(8):
            a(f"v_cvt_pk_bf16_f32 v{XR+i}, v{DR+2*i}, v{DR+2*i+1}\nv_cvt_pk_bf16_f32 v{XI+i}, v{DI+2*i}, v{DI+2*i+1}")
    a("s_waitcnt lgkmcnt(8)")
    rest = cstage(4, True, C64, S64, N64)
    a("s_waitcnt lgkmcnt(0)")
    for i in range(16): a(f"v_and_b32 v{XI+i}, s{S_IMM}, v{XI+i}")
    for x in rest: a(x)
    cmul_pack(lambda i: TF + i, lambda i: TF + 16 + i, True)
    for x in cstage(2, False, C32, S32, N32): a(x)
    cmul_pack(lambda i: WF + i, lambda i: WF + 16 + i, False)
    for x in cstage(2, True, C32, N32, S32): a(x)
    cmul_pack(lambda i: TI + i, lambda i: TI + 16 + i, False)
    for t in range(2):
        a(f"ds_write_b128 v7, {vr(XR+4*t,4)} offset:{L_EX + t*1024}\nds_write_b128 v7, {vr(XI+4*t,4)} offset:{L_EX + 4096 + t*1024}")
    a("s_waitcnt lgkmcnt(0)\ns_barrier")
    for ks in range(4): a(f"ds_read_b128 {vr(XR+4*ks,4)}, v6 offset:{L_EX + ks*1024}")
    for ks in range(4): a(f"ds_read_b128 {vr(XI+4*ks,4)}, v6 offset:{L_EX + 4096 + ks*1024}")
    a(f"""v_and_b32 v4, 31, v{V_L}
v_lshlrev_b32 v4, 7, v4
v_lshrrev_b32 v5, 5, v{V_L}
v_lshl_add_u32 v4, v5, 3, v4
v_add_u32 v4, s{S_T+1}, v4
v_add_u32 v5, s{S_T+1}, v{V_L16}
s_waitcnt lgkmcnt(4)""")
    rest = cstage(4, True, C64, N64, S64)
    a("s_waitcnt lgkmcnt(0)")
    for x in rest: a(x)
    TT = TF
    for i in range(8): a(f"v_cvt_pk_bf16_f32 v{TT+i}, v{DR+2*i}, v{DR+2*i+1}")
    for i in range(8): a(f"v_cvt_pk_bf16_f32 v{TT+8+i}, v{DI+2*i}, v{DI+2*i+1}")
    for q in range(4):
        a(f"ds_write_b64 v4, {vr(TT+2*q,2)} offset:{L_IN + 16*q}\nds_write_b64 v4, {vr(TT+8+2*q,2)} offset:{L_IN + 64 + 16*q}")
    a(f"""s_or_b32 s{S_T+4}, s{S_IMM}, 0x0f0f0f0f
s_mov_b32 s{S_T+5}, s{S_T+4}
v_add_u32 v{va}, s{S_RO}, v{va}
s_waitcnt lgkmcnt(0)""")
    for i in range(4): a(f"ds_read_b128 {vr(DR+4*i,4)}, v5 offset:{L_IN + i*1024}")
    a(f"s_mov_b64 exec, s[{S_T+4}:{S_T+5}]")
    for i in range(4):
        a(f"s_waitcnt lgkmcnt({3-i})\nglobal_store_dwordx4 v{va}, {vr(DR+4*i,4)}, s[{S_P+2}:{S_P+3}] sc1")
        if i < 3: a(f"v_add_u32 v{va}, 0x40000, v{va}")
    L = a.label("L_t2f")
    a(f"s_mov_b64 exec, -1\ns_waitcnt vmcnt(0)\ns_barrier\ns_cmp_lg_u32 s{S_W}, 0\ns_cbranch_scc1 {L}\ns_lshl_b32 s{S_T}, s{stask}, 2\ns_add_u32 s{S_T}, s{S_T}, {FL_T2}")
    set_flag(a, S_T, 1, 2, 3)
    a(f"{L}:")
```

```python
from wcommon import *
ONES = 0x3f803f80
CS = 248
S_M, S_HD, S_HF = 46, 47, 48
L_RAW = 0x10000
L_RB = 0x8000
def wreg(tile, ks): return ar(128 * tile + 4 * ks, 4)

def params(a):
    a(f"s_lshr_b32 s{S_M}, s{S_C}, 6\ns_bfe_u32 s{S_HD}, s{S_C}, 0x50001\ns_and_b32 s{S_HF}, s{S_C}, 1")

def load_w_issue(a):
    a(f"""s_cmp_eq_u32 s{S_M}, 0
s_cselect_b32 s{S_T}, {KA_WK}, {KA_WV}
s_cmp_eq_u32 s{S_M}, 2
s_cselect_b32 s{S_T}, {KA_WQ}, s{S_T}
s_load_dwordx2 s[{S_P+4}:{S_P+5}], s[0:1], s{S_T}
v_lshrrev_b32 v2, 3, v{V_L}
s_lshl_b32 s{S_T}, s{S_W}, 7
v_add_u32 v2, s{S_T}, v2
v_lshlrev_b32 v2, 13, v2
v_and_b32 v3, 7, v{V_L}
v_lshl_add_u32 v2, v3, 4, v2
s_and_b32 s{S_T}, s{S_C}, 63
s_lshl_b32 s{S_T}, s{S_T}, 7
v_add_u32 v2, s{S_T}, v2
s_lshl_b32 s{S_T}, s{S_W}, 14
s_waitcnt lgkmcnt(0)""")
    for i in range(16):
        a(f"s_add_u32 m0, s{S_T}, {L_RAW + i*1024}")
        if i: a("v_add_u32 v2, 0x10000, v2")
        a(f"global_load_lds_dwordx4 v2, s[{S_P+4}:{S_P+5}]")

def load_w_finish(a):
    a(f"""v_lshrrev_b32 v4, 5, v{V_L}
v_lshlrev_b32 v4, 3, v4
v_bfe_u32 v5, v{V_L}, 2, 2
v_add_u32 v4, v4, v5
v_lshlrev_b32 v4, 7, v4
v_bfe_u32 v5, v{V_L}, 4, 1
v_lshl_add_u32 v4, v5, 5, v4
v_and_b32 v5, 3, v{V_L}
v_lshl_add_u32 v4, v5, 3, v4
v_add_u32 v4, {L_RAW}, v4
s_barrier""")
    n = 0
    for ks in range(32):
        for tile in range(2):
            for pp in range(2):
                a(f"ds_read_b64_tr_b16 {ar(128*tile+4*ks+2*pp,2)}, v4 offset:{(16*ks+4*pp)*128 + tile*64}")
                n += 1
                if n % 12 == 0: a("s_waitcnt lgkmcnt(2)")
    a("s_waitcnt lgkmcnt(0)\ns_barrier")

def colsum(a):
    for j in range(4): a(f"v_mov_b32 v{8+j}, {hex(ONES)}")
    for tile in range(2):
        for ks in range(32):
            a(f"v_mfma_f32_32x32x16_bf16 {vr(16+16*tile,16)}, v[8:11], {wreg(tile,ks)}, {'0' if ks == 0 else vr(16+16*tile,16)}")
    a(f"v_cmp_gt_u32 vcc, 32, v{V_L}")
    for tile in range(2):
        c = 16 + 16 * tile; o = CS + 4 * tile
        a(f"""v_cvt_pk_bf16_f32 v8, v{c}, v{c}
v_lshlrev_b32 v9, 16, v8
v_sub_f32 v10, v{c}, v9
v_cvt_pk_bf16_f32 v11, v9, v10
v_and_b32 v12, 0xffff0000, v11
v_sub_f32 v10, v10, v12
v_cvt_pk_bf16_f32 v12, v10, 0
v_cndmask_b32 v{o}, 0, v11, vcc
v_cndmask_b32 v{o+1}, 0, v12, vcc
v_mov_b64 {vr(o+2,2)}, 0""")

def loop(a, layer, isv):
    XF, ACC, ST, MX, RB, PK = 64, 16, 48, 56, 192, 208
    VA, VF, VR = 2, 3, 4
    L_top, L_end = a.label("L_t4"), a.label("L_t4e")
    SX, SO, SS, SFO = S_P, S_P + 2, S_P + 6, S_P + 8
    SN = S_P + 9
    if isv:
        a(f"""v_bfe_u32 v{VA}, v{V_L}, 4, 1
v_lshlrev_b32 v{VA}, 10, v{VA}
v_lshrrev_b32 v5, 5, v{V_L}
v_lshl_add_u32 v{VA}, v5, 8, v{VA}
v_and_b32 v5, 15, v{V_L}
v_lshl_add_u32 v{VA}, v5, 4, v{VA}
s_lshl_b32 s{S_T}, s{S_HD}, 14
s_lshl_b32 s{S_T+1}, s{S_HF}, 13
s_add_u32 s{S_T}, s{S_T}, s{S_T+1}
s_add_u32 s{S_T}, s{S_T}, {WS_KV + layer*32*MB + 2048 + 2048}
s_mov_b32 s{SN+1}, 0x200000
s_lshl_b32 s{S_T+1}, s{S_W}, 19""")
        offs = [[-2048, -2048 + 512], [2048, 2048 + 512]]
    else:
        a(f"""v_bfe_u32 v{VA}, v{V_L}, 4, 1
v_lshlrev_b32 v{VA}, 13, v{VA}
v_bfe_u32 v5, v{V_L}, 2, 1
v_lshl_add_u32 v{VA}, v5, 12, v{VA}
v_lshrrev_b32 v5, 5, v{V_L}
v_lshl_add_u32 v{VA}, v5, 8, v{VA}
v_bfe_u32 v5, v{V_L}, 3, 1
v_lshl_add_u32 v{VA}, v5, 6, v{VA}
v_and_b32 v5, 3, v{V_L}
v_lshl_add_u32 v{VA}, v5, 4, v{VA}
s_lshl_b32 s{S_T}, s{S_HD}, 14
s_lshl_b32 s{S_T+1}, s{S_HF}, 10
s_add_u32 s{S_T}, s{S_T}, s{S_T+1}
s_add_u32 s{S_T}, s{S_T}, {WS_KV + layer*32*MB}
s_lshl_b32 s{S_T+2}, s{S_HD}, 13
s_lshl_b32 s{S_T+1}, s{S_HF}, 12
s_add_u32 s{S_T+2}, s{S_T+2}, s{S_T+1}
s_add_u32 s{S_T+2}, s{S_T+2}, {WS_QX + layer*16*MB}
s_cmp_eq_u32 s{S_M}, 2
s_cselect_b32 s{S_T}, s{S_T+2}, s{S_T}
s_cselect_b32 s{S_T+3}, 18, 19
s_cselect_b32 s{S_T+4}, 3, 0
s_cselect_b32 s{S_T+5}, 2, 0
s_cselect_b64 vcc, -1, 0
s_lshl_b32 s{SN+1}, 4, s{S_T+3}
s_lshl_b32 s{S_T+1}, s{S_W}, s{S_T+3}
v_cndmask_b32 v{VA}, v{VA}, v{V_L16}, vcc
s_lshl_b32 s{S_T+4}, 128, s{S_T+4}
s_lshl_b32 s{S_T+5}, 512, s{S_T+5}
v_add_u32 v5, s{S_T+4}, v{VA}
v_add_u32 v6, s{S_T+5}, v{VA}
v_add_u32 v7, s{S_T+5}, v5""")
    a(f"""s_add_u32 s{S_T}, s{S_T}, s{S_T+1}
{add64(SO, S_WS, f's{S_T}')}
s_lshl_b32 s{S_T}, s{S_W}, 15
s_add_u32 s{S_T}, s{S_T}, {WS_XA + layer*2*MB + 4096}
{add64(SX, S_WS, f's{S_T}')}
s_lshl_b32 s{S_T}, s{S_W}, 10
s_add_u32 s{S_T}, s{S_T}, {WS_STATS + layer*0x10000}
{add64(SS, S_WS, f's{S_T}')}
s_lshl_b32 s{SFO}, s{S_HD}, 7
s_lshl_b32 s{S_T}, s{S_M}, 5
s_add_u32 s{SFO}, s{SFO}, s{S_T}
s_lshl_b32 s{S_T}, s{S_HF}, 4
s_add_u32 s{SFO}, s{SFO}, s{S_T}
s_lshl_b32 s{S_T}, s{S_W}, 2
s_add_u32 s{SFO}, s{SFO}, s{S_T}
s_add_u32 s{SFO}, s{SFO}, {FL_HD}
s_lshl_b32 s{S_T}, s{S_W}, 4
v_mov_b32 v{VF}, s{S_T}
v_and_b32 v{VR}, 31, v{V_L}
v_lshlrev_b32 v{VR}, 3, v{VR}
v_add_u32 v8, 0x2000, v{V_L16}
v_add_u32 v9, 0x4000, v{V_L16}
v_add_u32 v10, 0x6000, v{V_L16}
s_lshl_b32 s{S_T}, s{S_W}, 7
s_add_u32 s{S_T}, s{S_T}, {L_RB}
v_lshrrev_b32 v11, 1, v{VR}
v_add_u32 v11, s{S_T}, v11
v_lshrrev_b32 v12, 5, v{V_L}
v_lshl_add_u32 v12, v12, 4, s{S_T}
v_mov_b64 {vr(MX+2,2)}, 0
s_mov_b32 s{SN}, 0
{L_top}:""")
    wait_words(a, VF, 4, ST, 1, execmask="1", off=FL_T3)
    for q in range(4): a(f"global_load_dwordx2 {vr(ST+2*q,2)}, v{VR}, s[{SS}:{SS+1}] offset:{256*q} sc1")
    for ks in range(32):
        va = [V_L16, 8, 9, 10][ks >> 3]
        a(f"global_load_dwordx4 {vr(XF+4*ks,4)}, v{va}, s[{SX}:{SX+1}] offset:{(ks&7)*1024-4096} sc1")
    a("s_waitcnt vmcnt(32)")
    a(f"v_pk_add_f32 {vr(ST,2)}, {vr(ST,2)}, {vr(ST+2,2)}\nv_pk_add_f32 {vr(ST+4,2)}, {vr(ST+4,2)}, {vr(ST+6,2)}\nv_pk_add_f32 {vr(ST,2)}, {vr(ST,2)}, {vr(ST+4,2)}")
    ln_stats(a, ST, ST + 1, ST + 2, ST + 3, ST + 4)
    R = ST + 3
    a(f"""v_xor_b32 v{ST+2}, 0x80000000, v{ST+2}
v_lshrrev_b32 v{MX+1}, 16, v{ST+2}
v_or_b32 v{MX}, v{MX+1}, v{ST+2}""")
    if isv:
        a(f"ds_write_b32 v11, v{R}")
        for q in range(4): a(f"ds_read_b128 {vr(RB+4*q,4)}, v12 offset:{32*q}")
    def mm(tile, w, x, first):
        d = vr(ACC + 16 * tile, 16)
        return f"v_mfma_f32_32x32x16_bf16 {d}, {x}, {w}, {'0' if first else d}" if isv else f"v_mfma_f32_32x32x16_bf16 {d}, {w}, {x}, {'0' if first else d}"
    for tile in range(2): a(mm(tile, vr(CS + 4 * tile, 4), vr(MX, 4), True))
    for ks in range(32):
        a(f"s_waitcnt vmcnt({31-ks})")
        for tile in range(2): a(mm(tile, wreg(tile, ks), vr(XF + 4 * ks, 4), False))
    a(f"""{add64(SX, SX, '0x20000')}
{add64(SS, SS, '0x1000')}
v_add_u32 v{VF}, 64, v{VF}
s_add_u32 s{SN}, s{SN}, 1
s_waitcnt lgkmcnt(0)""")
    for tile in range(2):
        for i in range(16):
            c = ACC + 16 * tile + i
            a(f"v_mul_f32 v{c}, v{c}, v{RB+i if isv else R}")
        for i in range(8): a(f"v_cvt_pk_bf16_f32 v{PK+8*tile+i}, v{ACC+16*tile+2*i}, v{ACC+16*tile+2*i+1}")
        for gb in range(2):
            if isv: a(f"global_store_dwordx4 v{VA}, {vr(PK+8*tile+4*gb,4)}, s[{SO}:{SO+1}] offset:{offs[tile][gb]} sc1")
            else: a(f"global_store_dwordx4 v{[VA,5,6,7][2*tile+gb]}, {vr(PK+8*tile+4*gb,4)}, s[{SO}:{SO+1}] sc1")
    a(f"{add64(SO, SO, f's{SN+1}')}\ns_waitcnt vmcnt(0)")
    set_flag(a, SFO, f"s{SN}", ST, ST + 1)
    a(f"s_cmp_lt_u32 s{SN}, 16\ns_cbranch_scc1 {L_top}")
```

```python
from wcommon import *
S_G, S_HG, S_CH, S_MEMB = 50, 51, 52, 53
S_SC2 = 54
L_O, L_KM, L_RING = 0x0000, 0x8000, 0x10000
MASK = 240
pat = lambda rho: (rho & 3) + 8 * (rho >> 2)
def wreg(tile, ks): return ar(128 * tile + 4 * ks, 4)

def params(a):
    a(f"s_lshr_b32 s{S_G}, s{S_C}, 4\ns_and_b32 s{S_MEMB}, s{S_C}, 15\ns_and_b32 s{S_HG}, s{S_C}, 7\ns_bfe_u32 s{S_CH}, s{S_C}, 0x10003")

def load_wo(a):
    a(f"""s_load_dwordx2 s[{S_P+4}:{S_P+5}], s[0:1], {KA_WO}
v_lshrrev_b32 v2, 3, v{V_L}
s_lshl_b32 s{S_T}, s{S_HG}, 9
v_add_u32 v2, s{S_T}, v2
v_lshlrev_b32 v2, 10, v2
v_and_b32 v3, 7, v{V_L}
v_lshl_add_u32 v2, v3, 4, v2
s_lshl_b32 s{S_T}, s{S_CH}, 9
s_lshl_b32 s{S_T+1}, s{S_W}, 7
s_add_u32 s{S_T}, s{S_T}, s{S_T+1}
v_add_u32 v2, s{S_T}, v2
s_lshl_b32 s{S_T}, s{S_W}, 14
s_add_u32 s{S_T}, s{S_T}, {L_RING}
v_lshrrev_b32 v4, 5, v{V_L}
v_lshlrev_b32 v4, 2, v4
v_bfe_u32 v5, v{V_L}, 2, 2
v_add_u32 v4, v4, v5
v_lshlrev_b32 v4, 7, v4
v_bfe_u32 v5, v{V_L}, 4, 1
v_lshl_add_u32 v4, v5, 5, v4
v_and_b32 v5, 1, v{V_L}
v_lshl_add_u32 v4, v5, 4, v4
v_bfe_u32 v5, v{V_L}, 1, 1
v_lshl_add_u32 v4, v5, 3, v4
v_add_u32 v4, s{S_T}, v4
s_waitcnt lgkmcnt(0)""")
    def dma(n):
        for i in range(4):
            a(f"s_add_u32 m0, s{S_T}, {(n%4)*4096 + i*1024}")
            if n or i: a("v_add_u32 v2, 0x2000, v2")
            a(f"global_load_lds_dwordx4 v2, s[{S_P+4}:{S_P+5}]")
    for n in range(4): dma(n)
    for n in range(16):
        a(f"s_waitcnt vmcnt({4*min(15-n, 3)})")
        for gb in range(2):
            for tile in range(2):
                for pp in range(2):
                    a(f"ds_read_b64_tr_b16 {ar(128*tile+4*(2*n+gb)+2*pp,2)}, v4 offset:{(n%4)*4096 + (16*gb+8*pp)*128 + tile*64}")
        a("s_waitcnt lgkmcnt(0)")
        if n + 4 < 16: dma(n + 4)
    a(f"v_and_b32 v2, 31, v{V_L}\nv_lshrrev_b32 v3, 5, v{V_L}\nv_lshlrev_b32 v3, 2, v3\nv_sub_u32 v2, v2, v3\nv_mov_b32 v3, 0xff800000")
    for rho in range(16):
        a(f"v_cmp_gt_i32 vcc, {pat(rho)}, v2\nv_cndmask_b32 v{MASK+rho}, 0, v3, vcc")
    a(f"s_mov_b32 s{S_SC2}, 0x3e0293ee")

def loop(a, layer, after_seg=None):
    Q_, K_, V_, KMF, SX, S0, S1, OT, VMF = 16, 48, 80, 112, 128, 144, 160, 176, 8
    VK, VV, VFL, VTH, VT, VM = 2, 3, 4, 5, 6, 7
    PQ, PK, PM, PP, PX = S_P, S_P + 2, S_P + 4, S_P + 6, S_P + 8
    L_top, L_end = a.label("L_t5"), a.label("L_t5e")
    a(f"""s_sub_u32 s{S_SEG}, s{S_G}, 1
s_cmp_eq_u32 s{S_G}, 0
s_cselect_b32 s{S_SEG}, 12, s{S_SEG}
{L_top}:
v_bfe_u32 v{VK}, v{V_L}, 4, 1
v_lshlrev_b32 v{VK}, 13, v{VK}
v_bfe_u32 v{VT}, v{V_L}, 2, 1
v_lshl_add_u32 v{VK}, v{VT}, 12, v{VK}
v_lshrrev_b32 v{VT}, 5, v{V_L}
v_lshl_add_u32 v{VK}, v{VT}, 8, v{VK}
v_lshlrev_b32 v{VV}, 8, v{VT}
v_bfe_u32 v{VT}, v{V_L}, 3, 1
v_lshl_add_u32 v{VK}, v{VT}, 6, v{VK}
v_and_b32 v{VT}, 3, v{V_L}
v_lshl_add_u32 v{VK}, v{VT}, 4, v{VK}
v_bfe_u32 v{VT}, v{V_L}, 4, 1
v_lshl_add_u32 v{VV}, v{VT}, 10, v{VV}
v_and_b32 v{VT}, 15, v{V_L}
v_lshl_add_u32 v{VV}, v{VT}, 4, v{VV}
v_add_u32 v{VV}, 0x1000, v{VV}
s_lshl_b32 s{S_T}, s{S_HG}, 2
s_add_u32 s{S_T}, s{S_T}, s{S_W}
s_lshl_b32 s{S_T+1}, s{S_SEG}, 5
s_add_u32 s{S_T+1}, s{S_T+1}, s{S_T}
s_lshl_b32 s{S_T+2}, s{S_T+1}, 13
s_add_u32 s{S_T+2}, s{S_T+2}, {WS_QX + layer*16*MB + 4096}
{add64(PQ, S_WS, f's{S_T+2}')}
s_lshl_b32 s{S_T+2}, s{S_T+1}, 14
s_add_u32 s{S_T+2}, s{S_T+2}, {WS_KV + layer*32*MB}
{add64(PK, S_WS, f's{S_T+2}')}
s_lshl_b32 s{S_T+2}, s{S_T+1}, 12
s_add_u32 s{S_T+2}, s{S_T+2}, {WS_KM + layer*8*MB}
{add64(PM, S_WS, f's{S_T+2}')}
s_lshl_b32 s{S_T}, s{S_T}, 7
s_add_u32 s{S_T}, s{S_T}, {FL_HD}
s_and_b32 s{S_T+1}, s{S_SEG}, 3
s_lshl_b32 s{S_T+1}, s{S_T+1}, 2
s_add_u32 s{S_T+1}, s{S_T+1}, s{S_T}
v_add_u32 v{VFL}, s{S_T+1}, v{V_L16}
s_lshr_b32 s{S_T+2}, s{S_SEG}, 2
s_add_u32 s{S_T+2}, s{S_T+2}, 1""")
    wait_words(a, VFL, 1, VT, f"s{S_T+2}", execmask="63", sleep=4)
    for ks in range(8): a(f"global_load_dwordx4 {vr(Q_+4*ks,4)}, v{V_L16}, s[{PQ}:{PQ+1}] offset:{ks*1024-4096} sc1")
    for ks in range(8):
        wp, gb = ks >> 1, ks & 1
        a(f"global_load_dwordx4 {vr(K_+4*ks,4)}, v{VK}, s[{PK}:{PK+1}] offset:{(wp>>1)*1024 + (wp&1)*512 + gb*128} sc1")
    for wp in range(4):
        if wp == 2: a(f"v_add_u32 v{VV}, 0x2000, v{VV}")
        for gb in range(2):
            a(f"global_load_dwordx4 {vr(V_+8*wp+4*gb,4)}, v{VV}, s[{PK}:{PK+1}] offset:{(wp&1)*4096 - 2048 + gb*512} sc1")
    a("s_waitcnt vmcnt(8)")
    for ks in range(8):
        a(f"v_mfma_f32_32x32x16_bf16 {vr(SX,16)}, {vr(K_+4*ks,4)}, {vr(Q_+4*ks,4)}, {vr(MASK,16) if ks == 0 else vr(SX,16)}")
    a(f"""v_mov_b32 v{VFL}, s{S_T}
s_add_u32 s{S_T+2}, s{S_SEG}, 1
s_lshl_b32 s{S_T+3}, s{S_W}, 12
s_add_u32 s{S_T+3}, s{S_T+3}, {L_KM}
v_and_b32 v{VK}, 3, v{V_L}
v_lshlrev_b32 v{VK}, 6, v{VK}
v_lshrrev_b32 v{VT}, 5, v{V_L}
v_lshl_add_u32 v{VK}, v{VT}, 5, v{VK}
v_lshlrev_b32 v{VM}, 6, v{VT}
v_bfe_u32 v{VT}, v{V_L}, 2, 2
v_lshl_add_u32 v{VK}, v{VT}, 3, v{VK}
v_add_u32 v{VK}, s{S_T+3}, v{VK}
v_bfe_u32 v{VT}, v{V_L}, 3, 1
v_lshl_add_u32 v{VM}, v{VT}, 8, v{VM}
v_and_b32 v{VT}, 7, v{V_L}
v_lshl_add_u32 v{VM}, v{VT}, 3, v{VM}
v_bfe_u32 v{VT}, v{V_L}, 4, 1
v_lshl_add_u32 v{VM}, v{VT}, 2, v{VM}
v_add_u32 v{VM}, s{S_T+3}, v{VM}
v_add_u32 v{VM}, 0x800, v{VM}""")
    wait_words(a, VFL, 4, 8, f"s{S_T+2}", execmask="1", off=96, sleep=2)
    a(f"s_mov_b32 m0, s{S_T+3}")
    for i in range(4): a(f"global_load_lds_dwordx4 v{V_L16}, s[{PM}:{PM+1}] offset:{i*1024} sc1")
    M, T, LS = VTH, VT, VFL
    a(f"v_max3_f32 v{M}, v{SX}, v{SX+1}, v{SX+2}")
    for i in range(3, 15, 2): a(f"v_max3_f32 v{M}, v{M}, v{SX+i}, v{SX+i+1}")
    a(f"v_max_f32 v{M}, v{M}, v{SX+15}\ns_waitcnt vmcnt(0)")
    for wp in range(4):
        for pp in range(2): a(f"ds_read_b64_tr_b16 {vr(KMF+4*wp+2*pp,2)}, v{VK} offset:{wp*512 + pp*256}")
    a(f"v_add_u32 v{VK}, 0x400, v{VM}")
    for wp in range(4): a(f"ds_read2_b32 {vr(VMF+2*wp,2)}, v{VM if wp < 2 else VK} offset0:{(wp&1)*128} offset1:{(wp&1)*128+32}")
    for wp in range(4):
        a(f"s_waitcnt lgkmcnt({10-2*wp})")
        for gb, S in ((0, S0), (1, S1)):
            a(f"v_mfma_f32_32x32x16_bf16 {vr(S,16)}, {vr(KMF+4*wp,4)}, {vr(Q_+4*(2*wp+gb),4)}, {'0' if wp == 0 else vr(S,16)}")
    SMv = [S0, S0 + 1, S0 + 4, S0 + 5]
    for x in SMv: a(f"v_add_f32 v{x}, v{x}, v{S1 + (x - S0) + 2}")
    a(f"""v_max3_f32 v{M}, v{M}, v{SMv[0]}, v{SMv[1]}
v_max3_f32 v{M}, v{M}, v{SMv[2]}, v{SMv[3]}
v_mov_b32 v{T}, v{M}
v_permlane32_swap_b32 v{M}, v{T}
v_max_f32 v{M}, v{M}, v{T}
v_mul_f32 v{M}, s{S_SC2}, v{M}""")
    allv = [SX + i for i in range(16)] + SMv
    for x in allv: a(f"v_fma_f32 v{x}, v{x}, s{S_SC2}, -v{M}")
    for x in allv: a(f"v_exp_f32 v{x}, v{x}")
    a(f"v_add_f32 v{LS}, v{allv[0]}, v{allv[1]}\nv_add_f32 v{T}, v{allv[2]}, v{allv[3]}")
    for i in range(4, 20, 2): a(f"v_add_f32 v{LS}, v{LS}, v{allv[i]}\nv_add_f32 v{T}, v{T}, v{allv[i+1]}")
    a(f"""v_add_f32 v{LS}, v{LS}, v{T}
v_mov_b32 v{T}, v{LS}
v_permlane32_swap_b32 v{LS}, v{T}
v_add_f32 v{LS}, v{LS}, v{T}
v_rcp_f32 v{LS}, v{LS}""")
    for x in allv: a(f"v_mul_f32 v{x}, v{x}, v{LS}")
    P = K_
    for i in range(10): a(f"v_cvt_pk_bf16_f32 v{P+i}, v{allv[2*i]}, v{allv[2*i+1]}")
    a("s_waitcnt lgkmcnt(0)")
    for wp in range(4):
        d = vr(OT + 16 * wp, 16)
        a(f"v_mfma_f32_32x32x8_bf16 {d}, {vr(VMF+2*wp,2)}, {vr(P+8,2)}, 0")
        for gb in range(2): a(f"v_mfma_f32_32x32x16_bf16 {d}, {vr(V_+8*wp+4*gb,4)}, {vr(P+4*gb,4)}, {d}")
    a(f"s_lshl_b32 s{S_T+3}, s{S_W}, 13\nv_add_u32 v{VK}, s{S_T+3}, v{V_L16}")
    for wp in range(4):
        for i in range(8): a(f"v_cvt_pk_bf16_f32 v{Q_+8*wp+i}, v{OT+16*wp+2*i}, v{OT+16*wp+2*i+1}")
        for gb in range(2): a(f"ds_write_b128 v{VK}, {vr(Q_+8*wp+4*gb,4)} offset:{L_O + (2*wp+gb)*1024}")
    a(f"""s_lshl_b32 s{S_T}, s{S_SEG}, 18
s_lshl_b32 s{S_T+1}, s{S_HG}, 15
s_add_u32 s{S_T+1}, s{S_T+1}, s{S_T}
s_lshl_b32 s{S_T+2}, s{S_CH}, 14
s_add_u32 s{S_T+1}, s{S_T+1}, s{S_T+2}
s_lshl_b32 s{S_T+2}, s{S_W}, 12
s_add_u32 s{S_T+1}, s{S_T+1}, s{S_T+2}
s_add_u32 s{S_T+1}, s{S_T+1}, {WS_PART + layer*16*MB}
{add64(PP, S_WS, f's{S_T+1}')}
s_waitcnt lgkmcnt(0)
s_barrier""")
    FB, ACC = 48, 128
    Qs = Seq()
    rd = lambda ks: (f"ds_read_b128 {vr(FB+4*(ks%8),4)}, v{V_L16} offset:{L_O + ks*1024}", f"f{ks}")
    for k in range(7): Qs.add(rd(k))
    for ks in range(32):
        if ks + 7 < 32: Qs.add(rd(ks + 7))
        Qs.add(WL(f"f{ks}"))
        for tile in range(2):
            d = vr(ACC + 16 * tile, 16)
            Qs.add(f"v_mfma_f32_32x32x16_bf16 {d}, {wreg(tile,ks)}, {vr(FB+4*(ks%8),4)}, {'0' if ks == 0 else d}")
    for x in Qs.resolve(): a(x)
    for tile in range(2):
        for i in range(8): a(f"v_cvt_pk_bf16_f32 v{Q_+8*tile+i}, v{ACC+16*tile+2*i}, v{ACC+16*tile+2*i+1}")
        for t in range(2): a(f"global_store_dwordx4 v{V_L16}, {vr(Q_+8*tile+4*t,4)}, s[{PP}:{PP+1}] offset:{(2*tile+t)*1024} sc1")
    L_skip, L_nf = a.label("L_r2s"), a.label("L_r2n")
    a(f"""s_waitcnt vmcnt(0)
s_barrier
s_cmp_ge_u32 s{S_W}, 2
s_cbranch_scc1 {L_skip}
s_lshl_b32 s{S_T+4}, s{S_SEG}, 6
s_add_u32 s{S_T+4}, s{S_T+4}, {FL_T5}
s_cmp_lg_u32 s{S_W}, 0
s_cbranch_scc1 {L_nf}
s_lshl_b32 s{S_T+1}, s{S_MEMB}, 2
s_add_u32 s{S_T+1}, s{S_T+1}, s{S_T+4}""")
    set_flag(a, S_T + 1, 1, 2, 3)
    a(f"""{L_nf}:
s_lshl_b32 s{S_T+5}, s{S_MEMB}, 1
s_add_u32 s{S_T+5}, s{S_T+5}, s{S_W}
s_lshl_b32 s{S_T+1}, s{S_T+5}, 10
s_lshl_b32 s{S_T+2}, s{S_SEG}, 15
s_add_u32 s{S_T+2}, s{S_T+2}, s{S_T+1}
s_add_u32 s{S_T+3}, s{S_T+2}, {WS_XA + layer*2*MB}
{add64(PX, S_WS, f's{S_T+3}')}
global_load_dwordx4 v[48:51], v{V_L16}, s[{PX}:{PX+1}] sc1
s_add_u32 s{S_T+1}, s{S_T+1}, s{S_T}
s_add_u32 s{S_T+1}, s{S_T+1}, {WS_PART + layer*16*MB}
{add64(PP, S_WS, f's{S_T+1}')}
s_lshl_b32 s{S_T+1}, s{S_CH}, 5
s_add_u32 s{S_T+1}, s{S_T+1}, s{S_T+4}
v_add_u32 v{VFL}, s{S_T+1}, v{V_L16}""")
    wait_words(a, VFL, 4, 8, 1, execmask="3", sleep=0)
    a(f"v_mov_b32 v2, v{V_L16}")
    for g in range(8):
        a(f"global_load_dwordx4 {vr(16+4*g,4)}, v2, s[{PP}:{PP+1}] sc1")
        if g < 7: a("v_add_u32 v2, 0x8000, v2")
    a(f"s_mov_b32 s{S_T+3}, 0xffff0000")
    if layer == 0:
        a(f"s_add_u32 s{S_T+2}, s{S_T+2}, {WS_XB}\n{add64(PX, S_WS, f's{S_T+2}')}")
    else:
        a(f"""s_load_dwordx2 s[{PX}:{PX+1}], s[0:1], {KA_OUT}
s_lshl_b32 s{S_T+2}, s{S_SEG}, 15
s_lshl_b32 s{S_T+1}, s{S_T+5}, 5
s_add_u32 s{S_T+2}, s{S_T+2}, s{S_T+1}
v_and_b32 v3, 31, v{V_L}
v_lshlrev_b32 v3, 10, v3
v_lshrrev_b32 v4, 5, v{V_L}
v_lshl_add_u32 v3, v4, 4, v3
s_waitcnt lgkmcnt(0)
{add64(PX, PX, f's{S_T+2}')}""")
    A, B = 64, 72
    for g in range(8):
        a(f"s_waitcnt vmcnt({7-g})")
        d = A if g == 0 else B
        for j in range(4): a(f"v_lshlrev_b32 v{d+2*j}, 16, v{16+4*g+j}\nv_and_b32 v{d+2*j+1}, s{S_T+3}, v{16+4*g+j}")
        if g:
            for j in range(4): a(f"v_pk_add_f32 {vr(A+2*j,2)}, {vr(A+2*j,2)}, {vr(B+2*j,2)}")
    for j in range(4): a(f"v_cvt_pk_bf16_f32 v{16+j}, v{A+2*j}, v{A+2*j+1}")
    for j in range(4):
        a(f"v_lshlrev_b32 v{A+2*j}, 16, v{16+j}\nv_and_b32 v{A+2*j+1}, s{S_T+3}, v{16+j}\nv_lshlrev_b32 v{B+2*j}, 16, v{48+j}\nv_and_b32 v{B+2*j+1}, s{S_T+3}, v{48+j}")
    for j in range(4): a(f"v_pk_add_f32 {vr(A+2*j,2)}, {vr(A+2*j,2)}, {vr(B+2*j,2)}")
    for j in range(4): a(f"v_cvt_pk_bf16_f32 v{16+j}, v{A+2*j}, v{A+2*j+1}")
    if layer == 0:
        a(f"""global_store_dwordx4 v{V_L16}, v[16:19], s[{PX}:{PX+1}] sc1
s_lshl_b32 s{S_T+1}, s{S_SEG}, 7
s_lshl_b32 s{S_T+2}, s{S_T+5}, 2
s_add_u32 s{S_T+1}, s{S_T+1}, s{S_T+2}
s_add_u32 s{S_T+1}, s{S_T+1}, {FL_R2}
s_waitcnt vmcnt(0)""")
        set_flag(a, S_T + 1, 1, 2, 3)
    else:
        a(f"global_store_dwordx4 v3, v[16:19], s[{PX}:{PX+1}]")
    a(f"""{L_skip}:
s_add_u32 s{S_SEG}, s{S_SEG}, 13
s_cmp_lt_u32 s{S_SEG}, 64
s_cbranch_scc1 {L_top}""")
```

```python
from asmlib import *
from layout import *
S_WS, S_DBG = 4, 6
S_C, S_W = 8, 9
S_CNT = 10
S_FLG = 12
S_SEG = 14
S_OK = 15
S_T = 16
S_P = 32
V_L16, V_L = 0, 1
TMO = 400000

def add64(d, s, off):
    return f"s_add_u32 s{d}, s{s}, {off}\ns_addc_u32 s{d+1}, s{s+1}, 0"

def timeout():
    return f"s_add_u32 s{S_CNT}, s{S_CNT}, 1\ns_cmp_gt_u32 s{S_CNT}, {TMO}\ns_cbranch_scc1 L_fail"

def wait_words(a, voff, nd, vtmp, thr, execmask=None, off=0, sleep=1):
    L = a.label("L_wt")
    sfx = {1: "dword", 2: "dwordx2", 4: "dwordx4"}[nd]
    a(f"s_mov_b32 s{S_CNT}, 0")
    if execmask: a(f"s_mov_b64 exec, {execmask}")
    a(f"{L}:\nglobal_load_{sfx} {vr(vtmp, nd)}, v{voff}, s[{S_FLG}:{S_FLG+1}] offset:{off} sc1\n{timeout()}\ns_waitcnt vmcnt(0)")
    if nd == 2: a(f"v_min_u32 v{vtmp}, v{vtmp}, v{vtmp+1}")
    if nd == 4: a(f"v_min3_u32 v{vtmp}, v{vtmp}, v{vtmp+1}, v{vtmp+2}\nv_min_u32 v{vtmp}, v{vtmp}, v{vtmp+3}")
    a(f"v_cmp_gt_u32 vcc, {thr}, v{vtmp}")
    if sleep:
        L2 = a.label("L_wd")
        a(f"s_cbranch_vccz {L2}\ns_sleep {sleep}\ns_branch {L}\n{L2}:")
    else:
        a(f"s_cbranch_vccnz {L}")
    if execmask: a("s_mov_b64 exec, -1")

def set_flag(a, soff, val, v0, v1):
    a(f"v_mov_b32 v{v0}, s{soff}\nv_mov_b32 v{v1}, {val}\ns_mov_b64 exec, 1\nglobal_store_dword v{v0}, v{v1}, s[{S_FLG}:{S_FLG+1}] sc1\ns_mov_b64 exec, -1")

def start_barrier_wait(a, v0, v1):
    L = a.label("L_sb"); L2 = a.label("L_sbd")
    a(f"""s_cmp_eq_u32 s{S_OK}, 1
s_cbranch_scc1 {L2}
s_mov_b32 s{S_CNT}, 0
v_mov_b32 v{v0}, 0
{L}:
global_load_dword v{v1}, v{v0}, s[{S_DBG}:{S_DBG+1}] offset:128 sc1
{timeout()}
s_waitcnt vmcnt(0)
v_cmp_ne_u32 vcc, 0x100, v{v1}
s_cbranch_vccnz {L}
s_mov_b32 s{S_OK}, 1
{L2}:""")

def ln_stats(a, s1, s2, m, r, t):
    def rnd(x): return f"v_cvt_pk_bf16_f32 v{x}, v{x}, v{x}\nv_lshlrev_b32 v{x}, 16, v{x}"
    a(f"""v_mul_f32 v{m}, 0x3b000000, v{s1}
v_mul_f32 v{t}, 0x3b000000, v{s2}
v_fma_f32 v{t}, -v{m}, v{m}, v{t}
v_max_f32 v{t}, 0, v{t}
{rnd(t)}
v_add_f32 v{t}, 0x3727c5ac, v{t}
{rnd(t)}
v_sqrt_f32 v{t}, v{t}
{rnd(t)}
v_rcp_f32 v{r}, v{t}
{rnd(m)}""")
```

```python
import sys
from wcommon import *
import chain as ch, t13, t2, t4, t5
NAME = "interleave_layers__spectral_gfnet__memory_aug_recurrent_mem_tr__prompt_kernel"
CHAIN_CFG = dict(k1=0, k2=0, fw=-1, d1=320, dfs=40, sync=1)

def gen(cfg={}):
    a = Asm()
    stop = cfg.get("stop", 99)
    tr = cfg.get("trace")
    def mark(i):
        if tr: a(f"s_memrealtime s[{64+2*i}:{65+2*i}]")
    a(f"""
s_cmp_ge_u32 s2, 256
s_cbranch_scc1 L_end
s_load_dwordx2 s[4:5], s[0:1], {KA_WS}
s_load_dwordx2 s[6:7], s[0:1], {KA_DBG}
s_getreg_b32 s16, hwreg(HW_REG_XCC_ID)
s_and_b32 s16, s16, 15
v_lshrrev_b32 v1, 6, v0
v_readfirstlane_b32 s9, v1
v_and_b32 v0, 63, v0
s_waitcnt lgkmcnt(0)""")
    mark(0)
    a(f"""
s_cmp_eq_u32 s9, 0
s_cbranch_scc0 L_notw0
s_lshl_b32 s17, s2, 8
v_lshl_add_u32 v2, v0, 2, s17
v_mov_b32 v3, 0
global_store_dword v2, v3, s[4:5] sc1
v_mov_b32 v4, 1
s_mov_b64 exec, 1
s_mov_b32 s18, 32
s_cmp_eq_u32 s16, {cfg.get("xcc", 0)}
s_cbranch_scc0 L_tick
global_atomic_add v5, v3, v4, s[6:7] sc0
s_waitcnt vmcnt(0)
v_readfirstlane_b32 s18, v5
L_tick:
s_cmp_lt_u32 s18, 32
s_cbranch_scc1 L_role
global_atomic_add v5, v3, v4, s[6:7] offset:64 sc0
s_waitcnt vmcnt(0)
v_readfirstlane_b32 s18, v5
s_sub_u32 s19, 255, s18
s_add_u32 s18, s18, 32
s_cmp_ge_u32 s18, 256
s_cselect_b32 s18, s19, s18
L_role:
v_mov_b32 v5, s18
ds_write_b32 v3, v5
s_mov_b64 exec, -1
s_waitcnt lgkmcnt(0)
L_notw0:
s_barrier
v_mov_b32 v3, 0
ds_read_b32 v5, v3
s_waitcnt lgkmcnt(0)
v_readfirstlane_b32 s8, v5
s_barrier
s_cmp_ge_u32 s8, 256
s_cbranch_scc1 L_end
s_cmp_lt_u32 s8, 32
s_cbranch_scc0 L_worker
""")
    arrive = """s_waitcnt vmcnt(0)
s_barrier
s_cmp_eq_u32 s9, 0
s_cbranch_scc0 {L}
v_mov_b32 v40, 0
v_mov_b32 v41, 1
s_mov_b64 exec, 1
global_atomic_add v40, v41, s[6:7] offset:128
s_mov_b64 exec, -1
{L}:"""
    ccfg = dict(CHAIN_CFG); ccfg.update(cfg.get("chain", {}))
    ch.setup(a)
    ch.init_sentinels(a, "sc1")
    a(arrive.format(L="L_arr0"))
    if stop >= 5:
        ch.load_weights(a)
        a(f"""s_mov_b32 s{ch.S_CNT}, 0
v_mov_b32 v40, 0
L_cw0:
global_load_dword v41, v40, s[6:7] offset:128 sc1
global_load_dword v42, v40, s[6:7] offset:64 sc1
s_add_u32 s{ch.S_CNT}, s{ch.S_CNT}, 1
s_cmp_gt_u32 s{ch.S_CNT}, {TMO}
s_cbranch_scc1 L_fail
s_waitcnt vmcnt(0)
v_cmp_ne_u32 vcc, 0x100, v41
s_cbranch_vccnz L_cw0""")
        mark(1)
        a(f"v_cmp_lt_u32 vcc, 0xe0, v42\ns_cbranch_vccnz L_chain_slow")
        for mode in ("f", "s"):
            if mode == "s": a("L_chain_slow:")
            c = dict(ccfg); c["stf"] = "" if mode == "f" else "sc1"
            for layer in range(2 if stop >= 15 else 1):
                ch.layer_start(a, layer, c)
                if mode == "f": mark(2 + 2 * layer)
                ch.step_loop(a, c, f"{mode}{layer}")
                if mode == "f": mark(3 + 2 * layer)
            a("s_branch L_done")
    else:
        a("s_branch L_done")
    a(f"""L_worker:
s_sub_u32 s{S_C}, s8, 32
v_mov_b32 v{V_L}, v0
v_lshlrev_b32 v{V_L16}, 4, v0
s_mov_b32 s{S_OK}, 0""")
    a(arrive.format(L="L_arr1"))
    t4.params(a); t5.params(a)
    SQ, SG = 60, 61
    for layer in range(2):
        base = 10 * layer
        if stop < base + 1: break
        a(add64(S_FLG, S_WS, WS_FLAGS + layer * FL_LAYER))
        L_hi, L_sp, L_t4, L_t5, L_t1b, L_nl = [a.label(x) for x in ("L_hi", "L_sp", "L_t4s", "L_t5s", "L_t1b", "L_nl")]
        a(f"s_cmp_ge_u32 s{S_C}, 128\ns_cbranch_scc1 {L_hi}")
        def t2_all(stask, with_w4):
            t2.params(a, stask)
            if with_w4: t4.load_w_issue(a)
            t2.issue_w(a)
            t2.gen_consts(a)
            a("s_waitcnt vmcnt(0)")
            t2.finish_w(a)
            if with_w4: t4.load_w_finish(a)
            mark(1 + 5 * layer)
            if stop >= base + 2:
                start_barrier_wait(a, 2, 3)
                wait_words(a, V_L16, 4, 8, 1, off=FL_T1)
                mark(2 + 5 * layer)
                t2.run(a, layer, stask)
        t2_all(S_C, True)
        a(f"s_branch {L_t4}")
        a(f"{L_hi}:\ns_cmp_lt_u32 s{S_C}, 132\ns_cbranch_scc1 {L_sp}")
        a(f"s_sub_u32 s{SG}, s{S_C}, 132\ns_and_b32 s{SQ}, s{SG}, 3\ns_lshr_b32 s{SG}, s{SG}, 2")
        if layer == 0:
            L = a.label("L_t1l"); L2 = a.label("L_t1m")
            a(f"s_mov_b32 s{S_SEG}, s{SG}")
            t13.t1_issue(a, 0)
            t13.gen_FT(a, SQ)
            a(f"s_branch {L2}\n{L}:")
            t13.t1_issue(a, 0)
            a(f"{L2}:")
            t13.t1_compute(a, 0, SQ)
            a(f"s_add_u32 s{S_SEG}, s{S_SEG}, 23\ns_cmp_lt_u32 s{S_SEG}, 64\ns_cbranch_scc1 {L}")
        mark(1 + 5 * layer)
        if stop >= base + 3:
            t13.gen_FI(a, SQ)
            start_barrier_wait(a, 2, 3)
            a(f"v_cmp_gt_u32 vcc, 33, v{V_L}\ns_mov_b64 s[{S_T+6}:{S_T+7}], vcc\nv_min_u32 v2, 0x1f4, v{V_L16}")
            wait_words(a, 2, 4, 8, 1, execmask=f"s[{S_T+6}:{S_T+7}]", off=FL_T2)
            mark(2 + 5 * layer)
            L = a.label("L_t3l")
            a(f"s_mov_b32 s{S_SEG}, s{SG}\n{L}:")
            t13.t3_task(a, layer, SQ)
            a(f"s_add_u32 s{S_SEG}, s{S_SEG}, 23\ns_cmp_lt_u32 s{S_SEG}, 64\ns_cbranch_scc1 {L}")
        L_q = a.label("L_q")
        a(f"s_cmp_ge_u32 s{S_C}, 192\ns_cbranch_scc1 {L_t5}\n{L_q}:")
        t4.load_w_issue(a); a("s_waitcnt vmcnt(0)"); t4.load_w_finish(a)
        a(f"s_branch {L_t4}")
        a(f"{L_sp}:\ns_cmp_lg_u32 s{S_C}, 128\ns_cbranch_scc1 {L_q}")
        t2_all(S_C, False)
        a(f"s_branch {L_q}")
        a(f"{L_t4}:")
        mark(3 + 5 * layer)
        if stop >= base + 4:
            start_barrier_wait(a, 2, 3)
            t4.colsum(a)
            Lv = a.label("L_t4v")
            a(f"s_cmp_eq_u32 s{t4.S_M}, 1\ns_cbranch_scc1 {Lv}")
            t4.loop(a, layer, False)
            a(f"s_branch {L_t5}\n{Lv}:")
            t4.loop(a, layer, True)
        a(f"{L_t5}:")
        mark(4 + 5 * layer)
        if stop >= base + 6:
            a(f"s_barrier\ns_cmp_ge_u32 s{S_C}, 208\ns_cbranch_scc1 {L_t1b}")
            start_barrier_wait(a, 2, 3)
            t5.load_wo(a)
            t5.loop(a, layer)
            a(f"s_barrier\ns_branch {L_nl}")
            a(f"{L_t1b}:")
            if layer == 0 and stop >= 11:
                L = a.label("L_t1n")
                a(f"s_and_b32 s{SQ}, s{S_C}, 3\ns_bfe_u32 s{S_SEG}, s{S_C}, 0x20002")
                t13.gen_FT(a, SQ)
                start_barrier_wait(a, 2, 3)
                a(f"{L}:\ns_lshl_b32 s{S_T}, s{S_SEG}, 7\nv_add_u32 v2, s{S_T}, v{V_L16}\nv_add_u32 v2, {FL_R2}, v2")
                wait_words(a, 2, 4, 8, 1, execmask="0xff", sleep=2)
                t13.t1_issue(a, 1)
                a(add64(S_FLG, S_FLG, FL_LAYER))
                t13.t1_compute(a, 1, SQ)
                a(f"s_sub_u32 s{S_FLG}, s{S_FLG}, {FL_LAYER}\ns_subb_u32 s{S_FLG+1}, s{S_FLG+1}, 0")
                a(f"s_add_u32 s{S_SEG}, s{S_SEG}, 4\ns_cmp_lt_u32 s{S_SEG}, 64\ns_cbranch_scc1 {L}")
        a(f"{L_nl}:")
        mark(5 + 5 * layer)
    a("s_add_u32 s8, s8, 32\nL_done:")
    if tr:
        a(f"s_memrealtime s[88:89]\ns_waitcnt lgkmcnt(0)\ns_lshl_b32 s16, s8, 2\ns_add_u32 s16, s16, s9\ns_lshl_b32 s16, s16, 6\ns_add_u32 s16, s16, {WS_STAMP}\nv_mov_b32 v2, s16")
        for i in range(13): a(f"v_mov_b32 v3, s{64+2*i}\nglobal_store_dword v2, v3, s[4:5] offset:{4*i}")
    a(f"""s_branch L_end
L_fail:
s_mov_b64 exec, 1
v_mov_b32 v2, 0
v_mov_b32 v3, 1
global_atomic_add v2, v3, s[6:7] offset:192
L_end:
""")
    rep = []
    body = a.text(report=rep)
    return body, rep

def full_text(cfg={}):
    body, rep = gen(cfg)
    ref = open("interleave_layers__spectral_gfnet__memory_aug_recurrent_mem_tr__prompt.s.ref").read() if cfg.get("hdr") else ""
    hdr = "".join(l + "\n" for l in ref.split("\n") if l.startswith(";") and "@launch" not in l and "Override" not in l and "grid=ceil" not in l)
    return hdr + "; @launch grid=(256,1,1) block=(256,1,1) lds=163840\n" + HDR + kernel_text(NAME, body)

if __name__ == "__main__":
    t = full_text(dict(hdr=1))
    open("interleave_layers__spectral_gfnet__memory_aug_recurrent_mem_tr__prompt.s", "w").write(t)
    print(len(t), "bytes")
```

```python
from asmlib import *
from layout import *

L_MEM, L_Q, L_K, L_V, L_SX, L_O, L_CT, L_W = 0x0000, 0x2000, 0x3000, 0x3800, 0x0000, 0x0800, 0x2C00, 0x4000
WREG = 0x9000
QTS = 288

S_WS, S_H, S_W, S_STEP = 4, 8, 9, 10
S_IBW, S_IBW2 = 12, 14
S_IBR = 16
S_TAG, S_OWN = 18, 19
S_MB, S_MB2 = 20, 22
S_KV, S_FL, S_KM = 24, 26, 28
S_GS = 35
S_C = 30
S_W2K = 31
S_MLO = 32
S_CNT = 34
S_T = 36
S_U = 42
S_GM = 44
S_BX = 46
S_RDY = 49
S_FSR = 52
S_FHD = 56
S_ST = 60

V_L16, V_IDX, V_WL, V_KW, V_QW, V_QT, V_KT, V_OW, V_OR, V_ST0, V_POLL, V_KXA, V_SXW, V_T0, V_PUB, V_KP = range(16)
A0, QT, AC0, AC1, VX, KX, S0 = 16, 48, 64, 72, 80, 88, 96
AC2 = S0 + 8
KVN = 128

LDS_RES = [("q", 0), ("q", 1), ("k", 0), ("k", 2), ("k", 3), ("v", 7), ("o", 5), ("o", 6), ("o", 7)]
RF_RES = [(m, i) for m in "qkvo" for i in range(8) if (m, i) not in LDS_RES]
def rf_reg(m, i):
    j = RF_RES.index((m, i))
    return ("a", 16 * j) if j < 16 else ("v", 144 + 16 * (j - 16))
STAGE = {("q", 0): (S0, S0 + 8), ("q", 1): (S0 + 16, S0 + 24), ("k", 0): (QT, QT + 8), ("k", 2): (S0, S0 + 8), ("k", 3): (S0 + 16, S0 + 24),
         ("v", 7): (S0, S0 + 16), ("o", 5): (AC0, AC1), ("o", 6): (S0, S0 + 8), ("o", 7): (S0 + 16, S0 + 24)}
def wop(m, i, tb):
    if (m, i) in STAGE: return vr(STAGE[(m, i)][tb], 8)
    p, b = rf_reg(m, i)
    return vr(b + 8 * tb, 8, p)
def refill(m, i, tb):
    slot = (len(RF_RES) + LDS_RES.index((m, i))) % 9; b = STAGE[(m, i)][tb]
    return [(f"ds_read_b128 {vr(b+4*j,4)}, v{V_WL} offset:{slot*4096 + tb*2048 + j*1024}", f"{m}{i}{tb}") for j in range(2)]
def smf(d, a, m, i, tb):
    return f"v_smfmac_f32_16x16x64_bf16 {vr(d,4)}, {vr(a,4)}, {wop(m,i,tb)}, v{V_IDX}"
def zero(r): return f"v_mov_b64 {vr(r,2)}, 0"

def setup(a):
    n, g, r, c, g1, g0, r1, r0, n7, n3, t, u = range(20, 32)
    a(f"""
v_and_b32 v{n}, 15, v0
v_lshrrev_b32 v{g}, 4, v0
v_bfe_u32 v{r}, v0, 2, 2
v_and_b32 v{c}, 3, v0
v_lshrrev_b32 v{g1}, 5, v0
v_bfe_u32 v{g0}, v0, 4, 1
v_bfe_u32 v{r1}, v0, 3, 1
v_bfe_u32 v{r0}, v0, 2, 1
v_and_b32 v{n7}, 7, v0
v_bfe_u32 v{t}, v0, 1, 1
v_mul_u32_u24 v{t}, 0xAAAA, v{t}
v_or_b32 v{V_IDX}, 0x4444, v{t}
v_cmp_gt_u32 s[{S_MLO}:{S_MLO+1}], 8, v{n}
s_cmp_eq_u32 s{S_W}, 0
s_cselect_b32 s{S_GM}, 1, 0
s_mov_b32 s{S_GM+1}, 0
v_lshlrev_b32 v{t}, 2, v{g1}
v_lshl_add_u32 v{t}, v{g0}, 3, v{t}
v_add_u32 v{t}, v{t}, v{r0}
v_lshlrev_b32 v{t}, 4, v{t}
v_mul_u32_u24 v{u}, {QTS}, v{r1}
v_add_u32 v{t}, v{t}, v{u}
v_and_b32 v{u}, 1, v0
v_lshl_add_u32 v{t}, v{u}, 3, v{t}
v_add_u32 v{V_QT}, {L_Q}, v{t}
; KT = L_K + (g>>1)*512 + c*64 + (4(g&1) + r)*8
v_lshlrev_b32 v{t}, 9, v{g1}
v_lshl_add_u32 v{t}, v{c}, 6, v{t}
v_lshl_add_u32 v{t}, v{g0}, 5, v{t}
v_lshl_add_u32 v{t}, v{r}, 3, v{t}
v_add_u32 v{V_KT}, {L_K}, v{t}
s_mul_i32 s{S_T}, s{S_W}, {2*QTS}
s_add_u32 s{S_T}, s{S_T}, {L_Q}
v_lshlrev_b32 v{t}, 4, v{n}
v_lshl_add_u32 v{t}, v{g}, 2, v{t}
v_add_u32 v{V_QW}, s{S_T}, v{t}
; KW = w*512 + (n>>3)*256 + g*64 + (n&7)*8
s_lshl_b32 s{S_T}, s{S_W}, 9
v_lshlrev_b32 v{t}, 8, v{r1}
v_lshl_add_u32 v{t}, v{g}, 6, v{t}
v_lshl_add_u32 v{t}, v{n7}, 3, v{t}
v_add_u32 v{V_KW}, s{S_T}, v{t}
; OW = w*512 + g*128 + (n&7)*16 + (n>>3)*8
v_lshlrev_b32 v{t}, 7, v{g}
v_lshl_add_u32 v{t}, v{n7}, 4, v{t}
v_lshl_add_u32 v{t}, v{r1}, 3, v{t}
v_add_u32 v{V_OW}, s{S_T}, v{t}
v_and_b32 v{u}, 1, v0
v_lshl_add_u32 v{u}, v{r}, 1, v{u}
v_lshlrev_b32 v{u}, 4, v{u}
v_lshl_add_u32 v{V_OR}, v{g}, 7, v{u}
v_lshl_add_u32 v{u}, v{g}, 8, v{u}
v_bfe_u32 v{t}, v0, 1, 1
v_lshl_add_u32 v{V_KXA}, v{t}, 7, v{u}
; SXW = (2w + (g>>1))*128 + (n&7)*16 + (g&1)*8
s_lshl_b32 s{S_T}, s{S_W}, 8
v_lshlrev_b32 v{t}, 7, v{g1}
v_lshl_add_u32 v{t}, v{n7}, 4, v{t}
v_lshl_add_u32 v{t}, v{g0}, 3, v{t}
v_add_u32 v{V_SXW}, s{S_T}, v{t}
s_lshl_b32 s{S_T}, s{S_W}, 3
v_add_u32 v{t}, s{S_T}, v{g}
v_lshlrev_b32 v{t}, 13, v{t}
s_lshl_b32 s{S_T}, s{S_H}, 8
v_add_u32 v{t}, s{S_T}, v{t}
v_lshl_add_u32 v{V_ST0}, v{n}, 4, v{t}
s_lshl_b32 s{S_W2K}, s{S_W}, 11
v_lshlrev_b32 v{t}, 4, v0
v_add_u32 v{V_POLL}, s{S_W2K}, v{t}
v_bfe_u32 v{t}, v0, 1, 2
v_lshlrev_b32 v{t}, 8, v{t}
v_and_b32 v{u}, 1, v0
v_lshl_add_u32 v{t}, v{u}, 4, v{t}
v_lshl_add_u32 v{t}, v{g1}, 5, v{t}
v_lshl_add_u32 v{t}, v{g0}, 3, v{t}
s_lshr_b32 s{S_T}, s{S_H}, 2
s_lshl_b32 s{S_T}, s{S_T}, 10
s_and_b32 s{S_T+1}, s{S_H}, 3
s_lshl_b32 s{S_T+1}, s{S_T+1}, 6
s_add_u32 s{S_T}, s{S_T}, s{S_T+1}
v_add_u32 v{V_PUB}, s{S_T}, v{t}
; KP = w*1024 + l*16
s_lshl_b32 s{S_T}, s{S_W}, 10
v_lshlrev_b32 v{t}, 4, v0
v_add_u32 v{V_KP}, s{S_T}, v{t}
s_xor_b32 s{S_BX}, s{S_W2K}, 0x800
s_xor_b32 s{S_BX+1}, s{S_W2K}, 0x1000
s_xor_b32 s{S_BX+2}, s{S_W2K}, 0x1800
v_lshlrev_b32 v{t}, 4, v{g1}
v_lshl_add_u32 v{t}, v{g0}, 2, v{t}
v_lshl_add_u32 v{t}, v{r1}, 3, v{t}
v_add_u32 v{t}, v{t}, v{r0}
v_lshlrev_b32 v{t}, 6, v{t}
v_lshl_add_u32 v36, v{c}, 3, v{t}
v_lshlrev_b32 v{t}, 4, v{g0}
v_lshl_add_u32 v{t}, v{g1}, 2, v{t}
v_add_u32 v{t}, v{t}, v{r0}
v_lshlrev_b32 v{t}, 6, v{t}
v_lshl_add_u32 v{t}, v{r1}, 5, v{t}
v_lshl_add_u32 v37, v{c}, 3, v{t}
v_lshrrev_b32 v{t}, 2, v0
v_lshlrev_b32 v{u}, 13, v{t}
v_lshl_add_u32 v32, v{c}, 4, v{u}
v_lshlrev_b32 v{u}, 10, v{t}
v_lshl_add_u32 v33, v{c}, 4, v{u}
v_and_b32 v{t}, 1, v0
v_lshlrev_b32 v{t}, 4, v{t}
v_mov_b32 v{u}, 0x3f80
v_lshlrev_b32 v{u}, v{t}, v{u}
v_bfe_u32 v{t}, v0, 1, 2
""")
    for j in range(4):
        a(f"v_cmp_eq_u32 vcc, {j}, v{t}\nv_cndmask_b32 v{40+j}, 0, v{u}, vcc")
    a(f"""
v_lshlrev_b32 v{V_L16}, 4, v0
ds_write_b128 v{V_L16}, v[40:43] offset:{L_CT}
s_mul_i32 s{S_T}, s{S_W}, {WREG}
s_add_u32 s{S_T}, s{S_T}, {L_W}
v_add_u32 v{V_WL}, s{S_T}, v{V_L16}
v_add_u32 v36, s{S_T}, v36
v_add_u32 v37, s{S_T}, v37
s_mov_b32 s{S_C}, 0x3e0293ee      ; 128^-0.5 * log2(e)
s_add_u32 s{S_IBW}, s{S_WS}, {WS_INBOX}
s_addc_u32 s{S_IBW+1}, s{S_WS+1}, 0
s_add_u32 s{S_IBW2}, s{S_WS}, {WS_INBOX + 0x8000}
s_addc_u32 s{S_IBW2+1}, s{S_WS+1}, 0
s_lshl_b32 s{S_T}, s{S_H}, 13
s_add_u32 s{S_T}, s{S_T}, 4096
s_add_u32 s{S_IBR}, s{S_IBW}, s{S_T}
s_addc_u32 s{S_IBR+1}, s{S_IBW+1}, 0
s_lshl_b32 s{S_OWN}, 1, s{S_H}
s_not_b32 s{S_OWN}, s{S_OWN}
s_add_u32 s{S_MB}, s{S_WS}, {WS_MEMB}
s_addc_u32 s{S_MB+1}, s{S_WS+1}, 0
s_add_u32 s{S_MB2}, s{S_WS}, {WS_MEMB + 0x2000}
s_addc_u32 s{S_MB2+1}, s{S_WS+1}, 0
s_add_u32 s{S_FL}, s{S_WS}, {WS_MEMB + 0x4000}
s_addc_u32 s{S_FL+1}, s{S_WS+1}, 0
s_mov_b32 s{S_GS}, 0
s_waitcnt lgkmcnt(0)
""")

def init_sentinels(a, stf):
    a(f"""
v_mov_b64 v[40:41], -1
v_mov_b64 v[46:47], 0
v_mov_b64 v[48:49], 0
global_store_dwordx4 v{V_POLL}, v[46:49], s[{S_IBR}:{S_IBR+1}] offset:-4096 {stf}
global_store_dwordx4 v{V_POLL}, v[46:49], s[{S_IBR}:{S_IBR+1}] offset:-3072 {stf}
global_store_dwordx2 v{V_PUB}, v[40:41], s[{S_MB}:{S_MB+1}] {stf}
global_store_dwordx2 v{V_PUB}, v[40:41], s[{S_MB2}:{S_MB2+1}] {stf}
s_lshl_b32 s{S_T}, s{S_H}, 2
v_mov_b32 v44, s{S_T}
global_store_dword v44, v40, s[{S_FL}:{S_FL+1}] {stf}
""")

def load_weights(a):
    order = RF_RES + LDS_RES
    SB = {"q": 50, "k": 52, "v": 54, "o": 56}
    a(f"""
s_load_dwordx2 s[50:51], s[0:1], {KA_WQ}
s_load_dwordx2 s[52:53], s[0:1], {KA_WK}
s_load_dwordx2 s[54:55], s[0:1], {KA_WV}
s_load_dwordx2 s[56:57], s[0:1], {KA_WO}
s_lshl_b32 s{S_T}, s{S_H}, 8
s_lshl_b32 s{S_T+1}, s{S_W}, 6
s_add_u32 s{S_T}, s{S_T}, s{S_T+1}
v_add_u32 v32, s{S_T}, v32          ; + h*256 + w*64
s_lshl_b32 s{S_T}, s{S_H}, 17
s_lshl_b32 s{S_T+1}, s{S_W}, 8
s_add_u32 s{S_T}, s{S_T}, s{S_T+1}
v_add_u32 v33, s{S_T}, v33          ; + h*128*1024 + w*256
s_mul_i32 s58, s{S_W}, {WREG}
s_add_u32 s58, s58, {L_W}
s_lshl_b32 s59, s{S_W}, 1
s_waitcnt lgkmcnt(0)
""")
    def dma(n):
        m, i = order[n]; sl = n % 9
        if m != "o":
            a(f"s_xor_b32 s{S_T}, s59, {i}\ns_lshl_b32 s{S_T}, s{S_T}, 19\nv_add_u32 v35, s{S_T}, v32")
            step = 16 * 8192
        else:
            u, ks = i >> 1, i & 1
            a(f"v_add_u32 v35, {ks*65536 + u*64}, v33")
            step = 16 * 1024
        for j in range(4):
            a(f"s_add_u32 m0, s58, {sl*4096 + j*1024}")
            if j > 0: a(f"v_add_u32 v35, {step}, v35")
            a(f"global_load_lds_dwordx4 v35, s[{SB[m]}:{SB[m]+1}]")
    def trans(n):
        m, i = order[n]; sl = n % 9
        if n < 23: p, b = rf_reg(m, i)
        else: p, b = "v", S0
        for tb in range(2):
            for pp in range(4):
                if m != "o": off = (32 * (pp >> 1) + 2 * (pp & 1)) * 64 + tb * 32
                else: off = (32 * tb + 8 * (pp >> 1) + 2 * (pp & 1)) * 64
                a(f"ds_read_b64_tr_b16 {vr(b + 8*tb + 2*pp, 2, p)}, v{36 if m != 'o' else 37} offset:{sl*4096 + off}")
        a("s_waitcnt lgkmcnt(0)")
        if n >= 23:
            for j in range(4):
                a(f"ds_write_b128 v{V_WL}, {vr(S0+4*j,4)} offset:{sl*4096 + j*1024}")
            a("s_waitcnt lgkmcnt(0)")
    for n in range(9): dma(n)
    for n in range(32):
        left = min(31 - n, 8)
        a(f"s_waitcnt vmcnt({4*left})")
        trans(n)
        if n + 9 < 32: dma(n + 9)

def shadow_lds():
    return [x[0] for m, i in [("q", 0), ("q", 1), ("k", 0)] for tb in range(2) for x in refill(m, i, tb)]
def shadow_addr():
    return [f"v_add_u32 v{A0+8*b+4}, s{S_BX+b-1}, v{V_L16}" for b in range(1, 4)]

def kv_load(j):
    return f"global_load_dwordx4 {vr(KVN+4*j,4)}, v{V_KXA if j < 2 else V_L16}, s[{S_KV}:{S_KV+1}] offset:{j*1024} sc1"
def kv_reads():
    return [f"v_mov_b64 {vr(KX+2*j,2)}, {vr(KVN+2*j,2)}" for j in range(4)] + \
           [f"v_mov_b64 {vr(VX+2*j,2)}, {vr(KVN+8+2*(j if j < 2 else 5-j),2)}" for j in range(4)]

def kv_ready(a, cfg):
    L = a.label("L_kvr")
    t = KVN
    a(f"""s_mov_b32 s{S_CNT}, 0
s_mov_b64 exec, 15
v_lshlrev_b32 v{t+4}, 3, v{V_L16}
{L}:
global_load_dwordx4 {vr(t,4)}, v{t+4}, s[{S_FHD}:{S_FHD+1}] sc1
s_add_u32 s{S_CNT}, s{S_CNT}, 1
s_cmp_gt_u32 s{S_CNT}, {cfg.get("tmo", 400000)}
s_cbranch_scc1 L_fail
s_waitcnt vmcnt(0)
v_min3_u32 v{t}, v{t}, v{t+1}, v{t+2}
v_min_u32 v{t}, v{t}, v{t+3}
v_readlane_b32 s{S_T}, v{t}, 0
v_readlane_b32 s{S_T+1}, v{t}, 1
v_readlane_b32 s{S_T+2}, v{t}, 2
v_readlane_b32 s{S_T+3}, v{t}, 3
s_min_u32 s{S_T}, s{S_T}, s{S_T+1}
s_min_u32 s{S_T+2}, s{S_T+2}, s{S_T+3}
s_min_u32 s{S_T}, s{S_T}, s{S_T+2}
s_lshl_b32 s{S_RDY}, s{S_T}, 2
s_sub_u32 s{S_RDY}, s{S_RDY}, 2
s_cmp_eq_u32 s{S_T}, 16
s_cselect_b32 s{S_RDY}, 100, s{S_RDY}
s_cmp_lt_i32 s{S_STEP}, s{S_RDY}
s_cbranch_scc0 {L}
s_mov_b64 exec, -1""")

def layer_start(a, cfg={}):
    a(f"""
s_load_dwordx2 s[50:51], s[0:1], {KA_MEM0}
s_lshl_b32 s{S_T}, s{S_H}, 14
s_lshl_b32 s{S_T+1}, s{S_W}, 12
s_add_u32 s{S_T}, s{S_T}, s{S_T+1}
s_add_u32 s{S_T+1}, s{S_T}, {WS_KV}
s_add_u32 s{S_KV}, s{S_WS}, s{S_T+1}
s_addc_u32 s{S_KV+1}, s{S_WS+1}, 0
s_lshl_b32 s{S_T}, s{S_H}, 12
s_add_u32 s{S_T}, s{S_T}, {WS_KM - 0x20000}
s_add_u32 s{S_KM}, s{S_WS}, s{S_T}
s_addc_u32 s{S_KM+1}, s{S_WS+1}, 0
s_mov_b32 s{S_STEP}, -1
v_and_b32 v34, 0x70, v{V_OR}
v_lshlrev_b32 v34, 6, v34
v_bfe_u32 v35, v{V_L16}, 8, 2
v_lshl_add_u32 v34, v35, 5, v34
v_bfe_u32 v35, v{V_L16}, 5, 1
v_lshl_add_u32 v34, v35, 4, v34
s_lshl_b32 s{S_T}, s{S_W}, 8
v_add_u32 v34, s{S_T}, v34
s_waitcnt lgkmcnt(0)
global_load_dwordx4 {vr(A0,4)}, v34, s[50:51]
global_load_dwordx4 {vr(A0+4,4)}, v34, s[50:51] offset:128
""")
    if cfg.get("sync"):
        a(f"""s_lshl_b32 s{S_T}, s{S_H}, 10
s_add_u32 s{S_T}, s{S_T}, {FL_HD}
s_add_u32 s{S_FHD}, s{S_WS}, s{S_T}
s_addc_u32 s{S_FHD+1}, s{S_WS+1}, 0
s_lshl_b32 s{S_T}, s{S_W}, 2
s_add_u32 s{S_T}, s{S_T}, 768
s_add_u32 s{S_FSR}, s{S_FHD}, s{S_T}
s_addc_u32 s{S_FSR+1}, s{S_FHD+1}, 0
s_mov_b32 s{S_FSR+2}, 4
s_mov_b32 s{S_FSR+3}, 0x20000""")
        kv_ready(a, cfg)
    for x in shadow_lds() + [zero(AC0 + 2 * j) for j in range(8)] + [kv_load(j) for j in range(4)]: a(x)
    a("s_waitcnt vmcnt(0) lgkmcnt(0)")
    for x in kv_reads(): a(x)
    a(f"""s_waitcnt lgkmcnt(0)
ds_write_b128 v{V_POLL}, {vr(A0,4)} offset:{L_MEM}
ds_write_b128 v{V_POLL}, {vr(A0+4,4)} offset:{L_MEM+1024}""")

def swap(p, q):
    return [f"s_mov_b64 s[{S_T}:{S_T+1}], s[{p}:{p+1}]", f"s_mov_b64 s[{p}:{p+1}], s[{q}:{q+1}]", f"s_mov_b64 s[{q}:{q+1}], s[{S_T}:{S_T+1}]"]

def step_loop(a, cfg, tag):
    stf = cfg.get("stf", "")
    only = cfg.get("only")
    st = (lambda i: f"s_mem{'real' if cfg.get('rt') else ''}time s[{S_ST+2*i}:{S_ST+2*i+1}]" if (not only or i in only) else "") if cfg.get("stamp") else (lambda i: "")
    cnt = (lambda r: f"s_add_u32 s{r}, s{r}, s{S_CNT}") if (cfg.get("stamp") or cfg.get("cnt")) else (lambda r: "")
    Ab = lambda i: A0 + 4 * i
    L_top, L_last, L_fail = f"L_ch_top{tag}", f"L_ch_last{tag}", "L_fail"
    L_comm, L_p1, L_p1r, L_p2, L_p2c, L_nr, L_pf, L_p2r = [f"L_ch_{x}{tag}" for x in ("comm", "p1", "p1r", "p2", "p2c", "nr", "pf", "p2r")]
    tmo = cfg.get("tmo", 400000)
    SEL = KX; RD = KX + 4; MX = VX; NEG = VX + 2; FO = VX + 4; FD = VX + 5; VM = KX
    FA = A0 + 8; FV = A0 + 9
    L_p1b, L_p2w = f"L_ch_p1b{tag}", f"L_ch_p2w{tag}"
    inbox_loads = [f"global_load_dwordx4 {vr(Ab(i),4)}, v{V_L16}, s[{S_IBR}:{S_IBR+1}] offset:{1024*i-4096} sc1" for i in range(8)]
    pre = shadow_lds() + [zero(AC0 + 2 * j) for j in range(8)]
    DF = cfg.get("DF", 4)
    fpoll = f"global_load_dword v{FV}, v{FA}, s[{S_FL}:{S_FL+1}] sc1"
    poll2 = f"""global_load_dwordx4 {vr(Ab(0),4)}, v{V_POLL}, s[{S_MB}:{S_MB+1}] sc1
global_load_dwordx4 {vr(Ab(1),4)}, v{V_POLL}, s[{S_MB}:{S_MB+1}] offset:1024 sc1"""
    timeout = f"s_add_u32 s{S_CNT}, s{S_CNT}, 1\ns_cmp_gt_u32 s{S_CNT}, {tmo}\ns_cbranch_scc1 {L_fail}"
    def flagwait(lbl):
        a(f"""v_bfe_u32 v{FA}, v{V_L16}, 2, 7
v_mov_b32 v{FV}, -1
s_mov_b32 exec_hi, 0
s_mov_b32 exec_lo, s{S_OWN}
{lbl}:
{fpoll}
{timeout}
{nops(cfg.get("gf", 0))}
s_waitcnt vmcnt(40)
v_cmp_ne_u32 vcc, s{S_GS}, v{FV}
s_cbranch_vccnz {lbl}
s_mov_b64 exec, -1
""")
    a(f"s_branch {L_top}")
    a(f"{L_p1r}:\ns_mov_b64 exec, 1\nglobal_store_dword v{FO}, v{NEG}, s[{S_FL}:{S_FL+1}] {stf}\ns_mov_b64 exec, -1\n{timeout}")
    for x in inbox_loads: a(x)
    a(f"s_branch {L_p1b}")
    a(f"{L_p2r}:\ns_mov_b64 s[{S_U}:{S_U+1}], vcc")
    if cfg.get("cnt") or cfg.get("stamp"): a("s_add_u32 s89, s89, 1")
    if DF: flagwait(L_p2w)
    else: a(timeout)
    a(f"s_mov_b64 exec, s[{S_U}:{S_U+1}]\n{poll2}\ns_mov_b64 exec, -1\ns_branch {L_p2}")
    if cfg.get("sync"):
        a(f"L_ch_kvw{tag}:")
        kv_ready(a, cfg)
        a(f"s_branch L_ch_kvb{tag}")
    a(f"{L_nr}:")
    for x in pre: a(x)
    a(f"s_waitcnt vmcnt(2) lgkmcnt(12)")
    for x in kv_reads(): a(x)
    a(f"s_mov_b32 s{S_CNT}, 0\ns_cmp_eq_u32 s{S_W}, 1\ns_cbranch_scc0 L_ch_nb{tag}")
    if DF:
        if cfg.get("df0"): a(nops(cfg["df0"]))
        flagwait(L_pf)
    a(f"L_ch_nb{tag}:\ns_barrier")
    if cfg.get("d2"): a(nops(cfg["d2"]))
    a(st(1))
    a(poll2)
    a(f"{cnt(87)}\ns_mov_b32 s{S_CNT}, 0")
    a(f"s_branch {L_p2c}")
    a(f"{L_comm}:")
    k1 = cfg.get("k1", 4); k2 = cfg.get("k2", 20)
    for x in pre[:k1]: a(x)
    if cfg.get("d1"): a(nops(cfg["d1"]))
    a(st(5))
    for x in inbox_loads: a(x)
    a(f"s_lshl_b32 s{S_T}, s{S_H}, 2\nv_mov_b32 v{FO}, s{S_T}\nv_mov_b32 v{FD}, s{S_GS}\nv_mov_b64 {vr(NEG,2)}, -1\ns_mov_b32 s{S_CNT}, 0")
    for x in pre[k1:k2]: a(x)
    a(f"s_waitcnt lgkmcnt({min(k2, 12)})")
    a(f"{L_p1b}:")
    if cfg.get("dfs"): a(nops(cfg["dfs"]))
    fw = cfg.get("fw", 0)
    fstore = f"s_mov_b64 exec, 1\nglobal_store_dword v{FO}, v{FD}, s[{S_FL}:{S_FL+1}] {stf}\ns_mov_b64 exec, -1"
    if fw < 0: a(fstore)
    for i in range(8):
        a(f"s_waitcnt vmcnt({7 - i + (1 if i > fw else 0)})")
        a(f"v_mfma_f32_16x16x32_bf16 {vr(RD,4)}, {vr(Ab(i),4)}, {vr(SEL,4)}, {'0' if i == 0 else vr(RD,4)}")
        if i == fw: a(fstore)
        if i == 0: a(f"v_xor_b32 v{MX}, s{S_TAG}, v{Ab(0)}")
        else: a(f"v_bitop3_b32 v{MX}, v{MX}, v{Ab(i)}, s{S_TAG} bitop3:0xf6")
    a(f"""
v_and_b32 v{MX}, 1, v{MX}
v_cmp_ne_u32 vcc, 0, v{MX}
s_cbranch_vccnz {L_p1r}
s_mov_b64 exec, s[{S_MLO}:{S_MLO+1}]
v_cvt_pk_bf16_f32 v{RD}, v{RD}, v{RD+1}
v_cvt_pk_bf16_f32 v{RD+1}, v{RD+2}, v{RD+3}
global_store_dwordx2 v{V_PUB}, {vr(RD,2)}, s[{S_MB}:{S_MB+1}] {stf}
global_store_dwordx2 v{V_PUB}, {vr(NEG,2)}, s[{S_MB2}:{S_MB2+1}] {stf}
s_mov_b64 exec, -1
{st(6)}
{cnt(88)}
s_mov_b32 s{S_CNT}, 0
""")
    a("s_barrier")
    if cfg.get("d2"): a(nops(cfg["d2"]))
    a(st(1))
    a(poll2)
    for x in pre[k2:] + kv_reads(): a(x)
    a(f"{L_p2c}:")
    if cfg.get("cnt") and tag == "0":
        a(f"s_cmp_eq_u32 s{S_STEP}, 3\ns_cbranch_scc0 L_m0\ns_memtime s[96:97]\ns_memrealtime s[92:93]\ns_mov_b32 s87, 0\ns_mov_b32 s88, 0\ns_mov_b32 s89, 0\nL_m0:")
    MX2 = V_T0
    a(f"""
s_waitcnt lgkmcnt(0)
{L_p2}:
s_waitcnt vmcnt(1)
ds_write_b128 v{V_POLL}, {vr(Ab(0),4)} offset:{L_MEM}
s_waitcnt vmcnt(0)
ds_write_b128 v{V_POLL}, {vr(Ab(1),4)} offset:{L_MEM+1024}
v_max3_u32 v{MX2}, v{Ab(0)}, v{Ab(0)+2}, v{Ab(1)}
v_max_u32 v{MX2}, v{MX2}, v{Ab(1)+2}
v_cmp_eq_u32 vcc, -1, v{MX2}
s_cbranch_vccnz {L_p2r}
{st(7)}
""")
    if cfg.get("dumpmem"):
        a(f"""s_lshl_b32 s{S_T}, s{S_STEP}, 13
s_add_u32 s{S_T}, s{S_T}, {WS_PART}
v_add_u32 v{V_T0}, s{S_T}, v{V_POLL}
global_store_dwordx4 v{V_T0}, {vr(Ab(0),4)}, s[{S_WS}:{S_WS+1}]
global_store_dwordx4 v{V_T0}, {vr(Ab(1),4)}, s[{S_WS}:{S_WS+1}] offset:1024
s_waitcnt vmcnt(0)""")
    if cfg.get("stamp"):
        a(f"s_cmp_eq_u32 s{S_STEP}, {cfg['stamp']}\ns_cbranch_scc0 {L_top}")
        a(f"s_waitcnt lgkmcnt(0)\ns_lshl_b32 s{S_T}, s{S_H}, 2\ns_add_u32 s{S_T}, s{S_T}, s{S_W}\ns_lshl_b32 s{S_T}, s{S_T}, 7\ns_add_u32 s{S_T}, s{S_T}, {WS_STAMP}\nv_mov_b32 v{V_T0}, s{S_T}")
        if cfg.get("rt"): a(f"s_mov_b32 s{S_ST+4}, s{S_CNT}")
        for i in range(13):
            a(f"v_mov_b32 v{A0+8}, s{S_ST+2*i}\nglobal_store_dword v{V_T0}, v{A0+8}, s[{S_WS}:{S_WS+1}] offset:{4*i}")
        a(f"s_waitcnt vmcnt(0)")
    if cfg.get("align"): a(f"s_branch {L_top}\n.p2align {cfg['align']}")
    for k in range(cfg.get("shift", 0)): a("s_nop 0")
    a(f"{L_top}:")
    Q = Seq(); G = Gaps()
    ACC = {"q": AC0, "k": AC1, "v": AC2}
    def mm(m, i, tb): return G.M(smf(ACC[m] + 4 * tb, Ab(i), m, i, tb))
    def post(ac, dst): return [f"v_add_f32 v{ac}, v{ac}, v{ac+2}", f"v_add_f32 v{ac+1}, v{ac+1}, v{ac+3}", f"v_cvt_pk_bf16_f32 v{dst}, v{ac}, v{ac+1}"]
    SX = AC0; SM = AC0 + 4; KM = AC1
    G.P(-1, st(0))
    for m, i in [("q", 0), ("q", 1), ("k", 0), ("k", 1)]:
        for tb in range(2): mm(m, i, tb)
    for m in "qk":
        for tb in range(2):
            for i in range(2, 8): mm(m, i, tb)
    for i in (0, 1, 2, 3): mm("v", i, 0)
    G.M(f"v_smfmac_f32_16x16x64_bf16 {vr(SX,4)}, {vr(KX,4)}, {vr(QT,8)}, v{V_IDX}")
    for i in (4, 5): mm("v", i, 0)
    G.M(f"v_smfmac_f32_16x16x64_bf16 {vr(SX,4)}, {vr(KX+4,4)}, {vr(QT+8,8)}, v{V_IDX}")
    for i in (6, 7): mm("v", i, 0)
    for i in (0, 1, 2, 3): mm("v", i, 1)
    G.M(f"v_smfmac_f32_16x16x64_bf16 {vr(SM,4)}, {vr(KM,4)}, {vr(QT,8)}, v{V_IDX}")
    G.M(f"v_smfmac_f32_16x16x64_bf16 {vr(SM,4)}, {vr(KM+4,4)}, {vr(QT+8,8)}, v{V_IDX}")
    for i in (4, 5, 6, 7): mm("v", i, 1)
    b1 = cfg.get("b1", 2)
    G.spreadV(0, shadow_addr())
    G.P(b1, "s_waitcnt lgkmcnt(0)", "s_barrier", st(8))
    for i in range(2, 8):
        G.D(b1 + i - 2, (f"ds_read_b128 {vr(Ab(i),4)}, v{A0+8*(i>>1)+4} offset:{L_MEM + 1024*(i&1)}", f"A{i}"))
        G.P(5 + i, WL(f"A{i}"))
    G.P(3, f"s_add_u32 s{S_KV}, s{S_KV}, {0 if cfg.get('nokvadv') else 0x80000}"); G.P(4, f"s_addc_u32 s{S_KV+1}, s{S_KV+1}, 0")
    for j, dm in enumerate([8, 11, 14, 17]): G.D(dm, kv_load(j))
    if cfg.get("sync"):
        G.P(5, f"s_cmp_lt_i32 s{S_STEP}, s{S_RDY}"); G.P(6, f"s_cbranch_scc0 L_ch_kvw{tag}", f"L_ch_kvb{tag}:")
        G.P(13, f"s_max_i32 s{S_U}, s{S_STEP}, 0"); G.V(13, f"v_mov_b32 v{V_T0}, s{S_U}")
        G.D(27, f"buffer_store_dword v{V_T0}, v{V_L16}, s[{S_FSR}:{S_FSR+3}], 0 offen sc1")
    G.D(9, (f"ds_read_b128 {vr(QT+4,4)}, v{V_KP} offset:{L_K}", "kp"))
    rk = refill("k", 2, 0) + refill("k", 3, 0) + refill("k", 2, 1) + refill("k", 3, 1)
    for x, p in zip(rk, [10, 12, 13, 15, 16, 18, 19, 20]): G.D(p, x)
    if not cfg.get("nokm"): G.D(23, f"global_store_dwordx4 v{V_KP}, {vr(QT+4,4)}, s[{S_KM}:{S_KM+1}] sc1")
    G.P(29, f"s_add_u32 s{S_KM}, s{S_KM}, 0x20000"); G.P(30, f"s_addc_u32 s{S_KM+1}, s{S_KM+1}, 0")
    G.P(14, f"s_add_u32 s{S_STEP}, s{S_STEP}, 1"); G.P(15, f"s_add_u32 s{S_GS}, s{S_GS}, 1"); G.P(16, f"s_and_b32 s{S_TAG}, s{S_GS}, 1")
    G.P(19, WL("k30")); G.P(20, st(10)); G.P(25, WL("k31"))
    for k, x in enumerate(swap(S_MB, S_MB2)): G.P(21 + k, x)
    G.spreadV(15, post(AC0, QT)); G.spreadV(18, [zero(AC0), zero(AC0 + 2)])
    G.spreadV(21, post(AC0 + 4, QT + 1)); G.spreadV(24, [zero(AC0 + 4), zero(AC0 + 6)])
    rv = refill("v", 7, 0) + refill("v", 7, 1)
    G.D(21, rv[0]); G.D(22, rv[1]); G.D(25, rv[2]); G.D(26, rv[3])
    G.D(24, (f"ds_write2_b32 v{V_QW}, v{QT}, v{QT+1} offset0:0 offset1:{QTS//4}", "qw"))
    G.P(28, WL("qw"), "s_barrier", st(11))
    for j in range(8):
        G.D(28 + j, (f"ds_read_b64_tr_b16 {vr(QT+2*j,2)}, v{V_QT} offset:{(j>>1)*2*QTS + (j&1)*32}", f"qt{j}"))
    G.V(27, zero(AC2)); G.V(29, zero(AC2 + 2)); G.V(37, zero(AC2 + 4)); G.V(38, zero(AC2 + 6))
    G.spreadV(30, post(AC1, AC1 + 2)); G.spreadV(33, post(AC1 + 4, AC1 + 3))
    G.P(35, WL("qt3")); G.P(38, WL("qt7"))
    G.D(36, (f"ds_write_b64 v{V_KW}, {vr(AC1+2,2)} offset:{L_K}", "kw"))
    b2 = cfg.get("b2", 41)
    G.P(b2, WL("kw"), "s_barrier", st(12))
    kt = [(f"ds_read_b64_tr_b16 {vr(KM+2*j,2)}, v{V_KT} offset:{(j>>1)*1024 + (j&1)*256}", f"kt{j}") for j in range(4)]
    G.D(b2, kt[0], kt[1]); G.D(b2 + 1, kt[2], kt[3])
    G.spreadD(37, refill("o", 7, 1)); G.spreadD(44, refill("o", 6, 0))
    G.V(41, f"v_add_f32 v{SX}, v{SX}, v{SX+2}"); G.V(42, f"v_add_f32 v{SX+1}, v{SX+1}, v{SX+3}")
    G.D(43, (f"ds_write_b64 v{V_SXW}, {vr(SX,2)} offset:{L_SX}", "sw"))
    G.spreadV(43, post(AC2, VM))
    G.P(45, WL("kt1")); G.P(46, WL("kt3"))
    G.P(47, WL("sw"), "s_barrier")
    X = SX
    G.D(47, (f"ds_read_b128 {vr(X,4)}, v{V_L16} offset:{L_SX}", "sx"))
    M, T, LS, T2 = A0, A0 + 1, A0 + 2, A0 + 3
    PX = A0 + 4; BM = A0 + 8; OCA = A0 + 12; OC0 = AC1
    OUT = QT; OA = A0 + 16; PK = A0
    G.V(48, zero(OUT))
    G.V(49, f"v_add_f32 v{SM}, v{SM}, v{SM+2}"); G.V(50, f"v_add_f32 v{SM+1}, v{SM+1}, v{SM+3}")
    G.P(51, WL("sx"), st(2))
    for kind, gp in cfg.get("drop", []): {"P": G.p, "D": G.m, "V": G.v}[kind].pop(gp, None)
    for k, v in cfg.get("probe", {}).items(): G.P(v, f"s_memtime s[{S_ST+2*int(k)}:{S_ST+2*int(k)+1}]")
    G.emit(Q)
    pv = post(AC2 + 4, VM + 1)
    ML = f"s[{S_MLO}:{S_MLO+1}]"
    Q.add(f"""
v_max3_f32 v{M}, v{X}, v{X+1}, v{SM}
v_max3_f32 v{T}, v{X+2}, v{X+3}, v{SM+1}
v_max_f32 v{M}, v{M}, v{T}
{zero(OUT+2)}
{zero(OUT+4)}
v_max_f32_dpp v{M}, v{M}, v{M} row_ror:8 row_mask:0xf bank_mask:0xf
v_mov_b32 v{T}, v{M}
{pv[0]}
{pv[1]}
v_permlane16_swap_b32 v{M}, v{T}
v_max_f32 v{M}, v{M}, v{T}
v_mov_b32 v{T}, v{M}
{pv[2]}
{zero(OUT+6)}
v_permlane32_swap_b32 v{M}, v{T}
v_max_f32 v{M}, v{M}, v{T}
v_mul_f32 v{M}, s{S_C}, v{M}
v_fma_f32 v{SM}, v{SM}, s{S_C}, -v{M}
v_fma_f32 v{SM+1}, v{SM+1}, s{S_C}, -v{M}
v_exp_f32 v{SM}, v{SM}
v_exp_f32 v{SM+1}, v{SM+1}
v_fma_f32 v{X}, v{X}, s{S_C}, -v{M}
v_cvt_pk_bf16_f32 v{T}, v{SM}, v{SM+1}
v_fma_f32 v{X+1}, v{X+1}, s{S_C}, -v{M}
v_cndmask_b32 v{BM}, 0, v{T}, {ML}
v_cndmask_b32 v{BM+1}, v{T}, 0, {ML}
v_fma_f32 v{X+2}, v{X+2}, s{S_C}, -v{M}
v_fma_f32 v{X+3}, v{X+3}, s{S_C}, -v{M}
v_mfma_f32_16x16x16_bf16 {vr(OC0,4)}, {vr(VM,2)}, {vr(BM,2)}, 0
v_exp_f32 v{X}, v{X}
v_exp_f32 v{X+1}, v{X+1}
v_exp_f32 v{X+2}, v{X+2}
v_exp_f32 v{X+3}, v{X+3}
v_cvt_pk_bf16_f32 v{PX}, v{X}, v{X+1}
v_cvt_pk_bf16_f32 v{PX+1}, v{X+2}, v{X+3}
v_add_f32 v{T}, v{SM}, v{SM+1}
v_mov_b32_dpp v{PX+2}, v{PX} row_ror:8 row_mask:0xf bank_mask:0xf
v_mov_b32_dpp v{PX+3}, v{PX+1} row_ror:8 row_mask:0xf bank_mask:0xf
v_add_f32 v{LS}, v{X}, v{X+1}
v_add_f32 v{T2}, v{X+2}, v{X+3}
v_mfma_f32_16x16x32_bf16 {vr(OCA,4)}, {vr(VX,4)}, {vr(PX,4)}, {vr(OC0,4)}
v_fma_f32 v{LS}, v{T}, 0.5, v{LS}
v_add_f32 v{LS}, v{LS}, v{T2}
v_mfma_f32_16x16x32_bf16 {vr(OC0,4)}, {vr(VX+4,4)}, {vr(PX,4)}, {vr(OC0,4)}
{zero(OUT+8)}
v_add_f32_dpp v{LS}, v{LS}, v{LS} row_ror:8 row_mask:0xf bank_mask:0xf
v_mov_b32 v{T}, v{LS}
{zero(OUT+10)}
{zero(OUT+12)}
v_permlane16_swap_b32 v{LS}, v{T}
v_add_f32 v{LS}, v{LS}, v{T}
v_mov_b32 v{T}, v{LS}
v_cndmask_b32 v{OC0}, v{OC0}, v{OCA}, {ML}
v_cndmask_b32 v{OC0+1}, v{OC0+1}, v{OCA+1}, {ML}
v_permlane32_swap_b32 v{LS}, v{T}
v_add_f32 v{LS}, v{LS}, v{T}
v_rcp_f32 v{LS}, v{LS}
v_cndmask_b32 v{OC0+2}, v{OC0+2}, v{OCA+2}, {ML}
v_cndmask_b32 v{OC0+3}, v{OC0+3}, v{OCA+3}, {ML}
v_pk_mul_f32 {vr(OC0,2)}, {vr(OC0,2)}, {vr(LS,2)} op_sel_hi:[1,0]
v_pk_mul_f32 {vr(OC0+2,2)}, {vr(OC0+2,2)}, {vr(LS,2)} op_sel_hi:[1,0]
v_cvt_pk_bf16_f32 v{OC0}, v{OC0}, v{OC0+1}
v_cvt_pk_bf16_f32 v{OC0+1}, v{OC0+2}, v{OC0+3}
ds_write_b64 v{V_OW}, {vr(OC0,2)} offset:{L_O}
{st(9)}
s_cmp_eq_u32 s{S_STEP}, 63
s_cbranch_scc1 {L_last}
{zero(OUT+14)}
s_waitcnt lgkmcnt(0)
s_barrier
""")
    for k in range(4): Q.add((f"ds_read_b128 {vr(OA+4*k,4)}, v{V_OR} offset:{L_O+512*k}", f"oa{k}"))
    Q.add(st(3))
    G = Gaps()
    for c in range(4):
        for k in range(4): G.M(smf(OUT + 4 * c, OA + 4 * k, "o", 2 * c + (k >> 1), k & 1))
    for k in range(4): G.P(k - 1, WL(f"oa{k}"))
    G.spreadD(0, refill("o", 5, 0) + refill("o", 5, 1) + refill("o", 6, 1) + refill("o", 7, 0))
    G.P(9, WL("o51"))
    G.D(8, f"ds_write_b64 v{V_KW}, {vr(VM,2)} offset:{L_V}")
    G.D(9, f"ds_read_b128 {vr(SEL,4)}, v{V_L16} offset:{L_CT}")
    G.P(11, WL("o70"))
    cv = lambda c: [f"v_cvt_pk_bf16_f32 v{PK+2*c+j}, v{OUT+4*c+2*j}, v{OUT+4*c+2*j+1}" for j in range(2)]
    for c in range(3): G.spreadV(4 * c + 5, cv(c))
    G.V(7, f"v_and_or_b32 v{PK}, v{PK}, -2, s{S_TAG}"); G.V(15, f"v_and_or_b32 v{PK+4}, v{PK+4}, -2, s{S_TAG}")
    G.D(11, f"global_store_dwordx4 v{V_ST0}, {vr(PK,4)}, s[{S_IBW}:{S_IBW+1}] {stf}")
    G.P(15, f"s_cmp_lg_u32 s{S_W}, 0")
    G.V(15, cv(3))
    G.emit(Q)
    Q.add(f"global_store_dwordx4 v{V_ST0}, {vr(PK+4,4)}, s[{S_IBW2}:{S_IBW2+1}] {stf}")
    Q.add(st(4))
    for x in Q.resolve(): a(x)
    a(f"s_cbranch_scc1 {L_nr}\ns_branch {L_comm}")
    a(f"{L_last}:")
    a(f"""ds_write_b64 v{V_KW}, {vr(VM,2)} offset:{L_V}
s_waitcnt lgkmcnt(0)
s_barrier
ds_read_b128 {vr(QT+4,4)}, v{V_KP} offset:{L_K}
s_waitcnt lgkmcnt(0)
global_store_dwordx4 v{V_KP}, {vr(QT+4,4)}, s[{S_KM}:{S_KM+1}] sc1""")
    for x in swap(S_MB, S_MB2): a(x)
    a(f"s_sub_u32 s{S_GS}, s{S_GS}, 1\ns_waitcnt vmcnt(0) lgkmcnt(0)")
    if cfg.get("sync"): a(f"v_mov_b32 v{V_T0}, 64\nbuffer_store_dword v{V_T0}, v{V_L16}, s[{S_FSR}:{S_FSR+3}], 0 offen sc1")
    a("s_barrier")
```

```python
MB = 1 << 20
LSTRIDE   = 128 * MB
WS_FLAGS  = 0x100000
WS_MEMB   = 0x10000
WS_STAMP  = 0x20000
WS_INBOX  = 0x40000
WS_STATS  = 0x80000
WS_XIN    = 2 * MB
WS_XA     = 4 * MB
WS_Z      = 6 * MB
WS_ZP     = 8 * MB
WS_KM     = 12 * MB
WS_KV     = 24 * MB
WS_QX     = 56 * MB
WS_PART   = 72 * MB
FL_T1 = WS_FLAGS + 0x00000
FL_T2 = WS_FLAGS + 0x02000
FL_T3 = WS_FLAGS + 0x04000
FL_HD = WS_FLAGS + 0x08000
FL_T5 = WS_FLAGS + 0x10000
FL_R2 = WS_FLAGS + 0x20000
KA_X, KA_WR, KA_WI, KA_BX, KA_MEM0, KA_WQ, KA_WK, KA_WV, KA_WO, KA_SEG, KA_OUT, KA_DBG, KA_WS = [8 * i for i in range(13)]
```

```python
from wcommon import *
FR = 128
ONES = 0x3f803f80

def fconst(x):
    import struct
    return hex(struct.unpack("<I", struct.pack("<f", x))[0])

def gen_FT(a, sq):
    st, ba, t0, t1 = 2, 3, 4, 5
    a(f"""s_lshl_b32 s{S_T}, s{sq}, 7
s_lshl_b32 s{S_T+1}, s{S_W}, 5
s_add_u32 s{S_T}, s{S_T}, s{S_T+1}
v_and_b32 v{t0}, 31, v{V_L}
v_add_u32 v{t0}, s{S_T}, v{t0}
v_lshrrev_b32 v{st}, 1, v{t0}
v_and_b32 v{t1}, 1, v{t0}
v_cmp_eq_u32 vcc, 1, v{t0}
v_mov_b32 v{ba}, 0x100
v_cndmask_b32 v{st}, v{st}, v{ba}, vcc
v_cndmask_b32 v{t1}, v{t1}, 0, vcc
v_cvt_f32_u32 v{st}, v{st}
v_mul_f32 v{st}, 0x3b000000, v{st}
v_cvt_f32_u32 v{t1}, v{t1}
v_mul_f32 v{t1}, 0x3e800000, v{t1}
v_lshrrev_b32 v{ba}, 5, v{V_L}
v_lshlrev_b32 v{ba}, 3, v{ba}
v_cvt_f32_u32 v{ba}, v{ba}
v_fma_f32 v{ba}, v{ba}, v{st}, v{t1}
v_fract_f32 v{ba}, v{ba}
""")
    for ks in range(32):
        for e in range(8):
            if e == 0: a(f"v_cos_f32 v8, v{ba}")
            else: a(f"v_fmamk_f32 v{8+e}, v{st}, {fconst(e)}, v{ba}\nv_cos_f32 v{8+e}, v{8+e}")
        if ks < 31: a(f"v_fmamk_f32 v{ba}, v{st}, {fconst(16)}, v{ba}\nv_fract_f32 v{ba}, v{ba}")
        for p in range(4): a(f"v_cvt_pk_bf16_f32 v{FR+4*ks+p}, v{8+2*p}, v{9+2*p}")

def gen_FI(a, sq):
    st, ba, t0, t1 = 2, 3, 4, 5
    a(f"""s_lshl_b32 s{S_T}, s{sq}, 7
s_lshl_b32 s{S_T+1}, s{S_W}, 5
s_add_u32 s{S_T}, s{S_T}, s{S_T+1}
v_and_b32 v{t0}, 0x13, v{V_L}
v_bfe_u32 v{t1}, v{V_L}, 2, 1
v_lshl_add_u32 v{t0}, v{t1}, 3, v{t0}
v_bfe_u32 v{t1}, v{V_L}, 3, 1
v_lshl_add_u32 v{t0}, v{t1}, 2, v{t0}
v_add_u32 v{t0}, s{S_T}, v{t0}
v_cvt_f32_u32 v{st}, v{t0}
v_mul_f32 v{st}, 0x3b000000, v{st}
v_lshrrev_b32 v{ba}, 5, v{V_L}
v_lshlrev_b32 v{ba}, 2, v{ba}
v_cvt_f32_u32 v{ba}, v{ba}
v_mul_f32 v{ba}, v{ba}, v{st}
v_fract_f32 v{ba}, v{ba}
v_lshlrev_b32 v{t0}, 31, v{t0}
v_or_b32 v{t0}, 0x3f803f80, v{t0}
""")
    for ks in range(32):
        for p in range(4):
            if p == 0: a(f"v_cos_f32 v8, v{ba}\nv_sin_f32 v9, -v{ba}")
            else: a(f"v_fmamk_f32 v{9+2*p}, v{st}, {fconst(p)}, v{ba}\nv_cos_f32 v{8+2*p}, v{9+2*p}\nv_sin_f32 v{9+2*p}, -v{9+2*p}")
        if ks < 31: a(f"v_fmamk_f32 v{ba}, v{st}, {fconst(8)}, v{ba}\nv_fract_f32 v{ba}, v{ba}")
        for p in range(4): a(f"v_cvt_pk_bf16_f32 v{FR+4*ks+p}, v{8+2*p}, v{9+2*p}")
    a(f"v_cmp_gt_u32 vcc, 32, v{V_L}\nv_cndmask_b32 v{FR}, v{FR}, v{t0}, vcc")

L_X, L_P, L_R, L_O = 0x0000, 0x8000, 0x8800, 0x9000

def dma_rows(a, sbase, va, sstep):
    a(f"s_lshl_b32 s{S_T}, s{S_W}, 13")
    for k in range(8):
        a(f"s_add_u32 m0, s{S_T}, {L_X + k*1024}")
        if k: a(f"v_add_u32 v{va}, {sstep}, v{va}")
        a(f"global_load_lds_dwordx4 v{va}, s[{sbase}:{sbase+1}] sc1")

def src_select(a, sks):
    a(f"""s_load_dwordx2 s[{S_P}:{S_P+1}], s[0:1], {KA_X}
{add64(S_T+4, S_WS, WS_XIN)}
v_and_b32 v2, 31, v{V_L}
v_lshlrev_b32 v2, 10, v2
v_lshrrev_b32 v3, 5, v{V_L}
v_lshl_add_u32 v2, v3, 4, v2
s_lshl_b32 s{S_T+2}, s{S_SEG}, 15
s_cmp_eq_u32 s{S_LAY}, 0
s_cselect_b64 vcc, -1, 0
s_cselect_b32 s{S_T+3}, 32, 0x400
s_waitcnt lgkmcnt(0)
s_cselect_b64 s[{S_P}:{S_P+1}], s[{S_P}:{S_P+1}], s[{S_T+4}:{S_T+5}]
s_mul_i32 s{S_T+4}, s{sks}, s{S_T+3}
s_add_u32 s{S_T+2}, s{S_T+2}, s{S_T+4}
{add64(S_P, S_P, f's{S_T+2}')}
v_cndmask_b32 v2, v{V_L16}, v2, vcc""")

def t1_issue(a):
    a(f"s_lshl_b32 s{S_T+1}, s{S_W}, 3")
    src_select(a, S_T + 1)
    dma_rows(a, S_P, 2, f"s{S_T+3}")

def t1_compute(a, sq, vm_after=0):
    ACC, FB, RR, RM = 16, 32, 64, 80
    a(f"""s_lshl_b32 s{S_T}, s{S_W}, 13
v_add_u32 v2, s{S_T}, v{V_L16}
s_waitcnt vmcnt({vm_after})""")
    for k in range(8): a(f"ds_read_b128 {vr(FB+4*k,4)}, v2 offset:{L_X + k*1024}")
    a(f"v_mov_b64 v[4:5], 0\nv_mov_b64 v[6:7], 0\ns_mov_b32 s{S_T+1}, {hex(ONES)}")
    for k in range(8):
        a(f"s_waitcnt lgkmcnt({7-k})")
        for j in range(4):
            r = FB + 4 * k + j
            a(f"v_dot2_f32_bf16 v{4+2*(j&1)}, v{r}, s{S_T+1}, v{4+2*(j&1)}\nv_dot2_f32_bf16 v{5+2*(j&1)}, v{r}, v{r}, v{5+2*(j&1)}")
    a(f"""s_nop 2
v_add_f32 v4, v4, v6
v_add_f32 v5, v5, v7
s_lshl_b32 s{S_T}, s{S_W}, 9
v_lshl_add_u32 v3, v{V_L}, 3, s{S_T}
ds_write_b64 v3, v[4:5] offset:{L_P}
s_waitcnt lgkmcnt(0)
s_barrier
v_and_b32 v3, 31, v{V_L}
v_lshlrev_b32 v3, 3, v3""")
    for k in range(8): a(f"ds_read_b64 {vr(RR+2*k,2)}, v3 offset:{L_P + 256*k}")
    for k in range(7): a(f"ds_read_b128 {vr(FB+4*k,4)}, v{V_L16} offset:{L_X + k*1024}")
    a("s_waitcnt lgkmcnt(7)")
    for k in (4, 2, 1):
        for i in range(k):
            a(f"v_add_f32 v{RR+2*i}, v{RR+2*i}, v{RR+2*(i+k)}\nv_add_f32 v{RR+2*i+1}, v{RR+2*i+1}, v{RR+2*(i+k)+1}")
    ln_stats(a, RR, RR + 1, 4, 5, 6)
    a(f"""v_mul_f32 v4, v4, v5
s_lshl_b32 s{S_T}, s{S_W}, 8
v_lshrrev_b32 v3, 1, v3
v_add_u32 v3, s{S_T}, v3
v_lshrrev_b32 v6, 5, v{V_L}
v_lshl_add_u32 v6, v6, 4, s{S_T}""")
    Q = Seq()
    for k in range(7): Q.items.append(("PL", f"f{k}"))
    for ks in range(32):
        if ks + 7 < 32: Q.add((f"ds_read_b128 {vr(FB+4*((ks+7)%8),4)}, v{V_L16} offset:{L_X + (ks+7)*1024}", f"f{ks+7}"))
        Q.add(WL(f"f{ks}"))
        Q.add(f"v_mfma_f32_32x32x16_bf16 {vr(ACC,16)}, {vr(FB+4*(ks%8),4)}, {vr(FR+4*ks,4)}, {'0' if ks == 0 else vr(ACC,16)}")
        if ks == 24: Q.add(f"ds_write2_b32 v3, v5, v4 offset0:0 offset1:32")
        if ks in (26, 27, 28, 29):
            q = ks - 26
            Q.add(f"ds_read_b128 {vr(RR+4*q,4)}, v6 offset:{L_R + 32*q}\nds_read_b128 {vr(RM+4*q,4)}, v6 offset:{L_R + 128 + 32*q}")
    a(f"v_add_u32 v3, {L_R}, v3")
    for x in Q.resolve(): a(x)
    a(f"""s_or_b32 s{S_T}, s{sq}, s{S_W}
v_and_b32 v4, 31, v{V_L}
v_or_b32 v5, s{S_T}, v4
v_cmp_eq_u32 vcc, 0, v5
v_mov_b32 v5, 0x44000000
v_cndmask_b32 v5, 0, v5, vcc
s_lshl_b32 s{S_T}, s{S_W}, 11
s_add_u32 s{S_T}, s{S_T}, {L_O}
v_lshlrev_b32 v4, 6, v4
v_lshrrev_b32 v6, 5, v{V_L}
v_lshl_add_u32 v4, v6, 3, v4
v_add_u32 v4, s{S_T}, v4
v_add_u32 v6, s{S_T}, v{V_L16}
s_waitcnt lgkmcnt(0)""")
    for i in range(16): a(f"v_mul_f32 v{RM+i}, v{RM+i}, v5")
    for i in range(16): a(f"v_fma_f32 v{ACC+i}, v{ACC+i}, v{RR+i}, -v{RM+i}")
    for i in range(8): a(f"v_cvt_pk_bf16_f32 v{FB+i}, v{ACC+2*i}, v{ACC+2*i+1}")
    for q in range(4): a(f"ds_write_b64 v4, {vr(FB+2*q,2)} offset:{16*q}")
    a(f"""s_lshl_b32 s{S_T}, s{S_SEG}, 15
s_lshl_b32 s{S_T+1}, s{sq}, 13
s_add_u32 s{S_T}, s{S_T}, s{S_T+1}
s_lshl_b32 s{S_T+1}, s{S_W}, 11
s_add_u32 s{S_T}, s{S_T}, s{S_T+1}
s_add_u32 s{S_T}, s{S_T}, {WS_Z}
{add64(S_P+2, S_WS, f's{S_T}')}
s_waitcnt lgkmcnt(0)
ds_read_b128 {vr(FB+8,4)}, v6
ds_read_b128 {vr(FB+12,4)}, v6 offset:1024
s_waitcnt lgkmcnt(1)
global_store_dwordx4 v{V_L16}, {vr(FB+8,4)}, s[{S_P+2}:{S_P+3}] sc1
s_waitcnt lgkmcnt(0)
global_store_dwordx4 v{V_L16}, {vr(FB+12,4)}, s[{S_P+2}:{S_P+3}] offset:1024 sc1
s_waitcnt vmcnt(0)
s_barrier""")
    L = a.label("L_t1f")
    a(f"s_cmp_lg_u32 s{S_W}, 0\ns_cbranch_scc1 {L}")
    start_barrier_wait(a, 2, 3)
    a(f"s_lshl_b32 s{S_T}, s{S_SEG}, 2\ns_add_u32 s{S_T}, s{S_T}, s{sq}\n{flag_off(S_T, S_T, FL_T1)}")
    set_flag(a, S_T, 1, 2, 3)
    a(f"{L}:")

def t3_resid(a, sq):
    a(f"s_lshl_b32 s{S_T+1}, s{sq}, 2\ns_add_u32 s{S_T+1}, s{S_T+1}, s{S_W}\ns_lshl_b32 s{S_T+1}, s{S_T+1}, 1")
    src_select(a, S_T + 1)
    a(f"""global_load_dwordx4 v[8:11], v2, s[{S_P}:{S_P+1}] sc1
v_add_u32 v2, s{S_T+3}, v2
global_load_dwordx4 v[12:15], v2, s[{S_P}:{S_P+1}] sc1""")

def t3_task(a, sq):
    ACC, FB = 16, 32
    a(f"s_lshl_b32 s{S_T+2}, s{S_SEG}, 15\ns_add_u32 s{S_T+2}, s{S_T+2}, {WS_ZP}\n{add64(S_P+2, S_WS, f's{S_T+2}')}")
    a(f"s_lshl_b32 s{S_T}, s{S_W}, 13\nv_add_u32 v2, s{S_T}, v{V_L16}")
    dma_rows(a, S_P + 2, 2, "0x400")
    t3_resid(a, sq)
    a(f"""v_lshrrev_b32 v4, 5, v{V_L}
v_lshlrev_b32 v4, 3, v4
v_bfe_u32 v5, v{V_L}, 2, 2
v_add_u32 v4, v4, v5
v_lshlrev_b32 v4, 6, v4
v_bfe_u32 v5, v{V_L}, 4, 1
v_lshl_add_u32 v4, v5, 5, v4
v_and_b32 v5, 3, v{V_L}
v_lshl_add_u32 v4, v5, 3, v4
s_waitcnt vmcnt(2)
s_barrier""")
    Q = Seq()
    def rd(ks): return [(f"ds_read_b64_tr_b16 {vr(FB+4*(ks%8)+2*pp,2)}, v4 offset:{L_X + ks*1024 + pp*256}", f"f{ks}") for pp in range(2)]
    for k in range(6): Q.add(rd(k))
    for ks in range(32):
        if ks + 6 < 32: Q.add(rd(ks + 6))
        Q.add(WL(f"f{ks}"))
        Q.add(f"v_mfma_f32_32x32x16_bf16 {vr(ACC,16)}, {vr(FR+4*ks,4)}, {vr(FB+4*(ks%8),4)}, {'0' if ks == 0 else vr(ACC,16)}")
    for x in Q.resolve(): a(x)
    a(f"""s_lshl_b32 s{S_T+1}, s{sq}, 2
s_add_u32 s{S_T+1}, s{S_T+1}, s{S_W}
s_lshl_b32 s{S_T+1}, s{S_T+1}, 11
s_lshl_b32 s{S_T+2}, s{S_SEG}, 15
s_add_u32 s{S_T+2}, s{S_T+2}, s{S_T+1}
s_add_u32 s{S_T+2}, s{S_T+2}, {WS_XA}
{add64(S_P+2, S_WS, f's{S_T+2}')}
s_mov_b32 s{S_T+1}, {hex(ONES)}
s_mov_b32 s{S_T+3}, 0xffff0000
v_mov_b64 v[4:5], 0
v_mov_b64 v[6:7], 0
s_waitcnt vmcnt(0)""")
    for i in range(8):
        a(f"v_lshlrev_b32 v{FB+2*i}, 16, v{8+i}\nv_and_b32 v{FB+2*i+1}, s{S_T+3}, v{8+i}")
    for i in range(8): a(f"v_cvt_pk_bf16_f32 v{8+i}, v{ACC+2*i}, v{ACC+2*i+1}")
    for i in range(8):
        a(f"v_lshlrev_b32 v{ACC+2*i}, 16, v{8+i}\nv_and_b32 v{ACC+2*i+1}, s{S_T+3}, v{8+i}")
    for i in range(8): a(f"v_pk_add_f32 {vr(ACC+2*i,2)}, {vr(ACC+2*i,2)}, {vr(FB+2*i,2)}")
    for i in range(8): a(f"v_cvt_pk_bf16_f32 v{8+i}, v{ACC+2*i}, v{ACC+2*i+1}")
    a(f"""global_store_dwordx4 v{V_L16}, v[8:11], s[{S_P+2}:{S_P+3}] sc1
global_store_dwordx4 v{V_L16}, v[12:15], s[{S_P+2}:{S_P+3}] offset:1024 sc1""")
    for i in range(8):
        a(f"v_dot2_f32_bf16 v{4+2*(i&1)}, v{8+i}, s{S_T+1}, v{4+2*(i&1)}\nv_dot2_f32_bf16 v{5+2*(i&1)}, v{8+i}, v{8+i}, v{5+2*(i&1)}")
    L = a.label("L_t3f")
    a(f"""s_nop 2
v_add_f32 v4, v4, v6
v_add_f32 v5, v5, v7
s_lshl_b32 s{S_T}, s{S_W}, 9
v_lshl_add_u32 v3, v{V_L}, 3, s{S_T}
ds_write_b64 v3, v[4:5] offset:{L_P}
s_waitcnt lgkmcnt(0)
s_barrier
s_cmp_lg_u32 s{S_W}, 0
s_cbranch_scc1 {L}
v_and_b32 v3, 31, v{V_L}
v_lshlrev_b32 v3, 3, v3""")
    for k in range(8): a(f"ds_read_b64 {vr(FB+2*k,2)}, v3 offset:{L_P + 256*k}")
    a(f"""s_lshl_b32 s{S_T}, s{S_SEG}, 2
s_add_u32 s{S_T}, s{S_T}, s{sq}
s_lshl_b32 s{S_T+1}, s{S_T}, 8
s_add_u32 s{S_T+1}, s{S_T+1}, {WS_STATS}
{add64(S_P+2, S_WS, f's{S_T+1}')}
s_waitcnt lgkmcnt(0)""")
    for k in (4, 2, 1):
        for i in range(k): a(f"v_pk_add_f32 {vr(FB+2*i,2)}, {vr(FB+2*i,2)}, {vr(FB+2*(i+k),2)}")
    a(f"""s_mov_b32 exec_hi, 0
global_store_dwordx2 v3, {vr(FB,2)}, s[{S_P+2}:{S_P+3}] sc1
s_mov_b32 exec_hi, -1
{L}:
s_waitcnt vmcnt(0)
s_barrier""")
    L = a.label("L_t3g")
    a(f"s_cmp_lg_u32 s{S_W}, 0\ns_cbranch_scc1 {L}\n{flag_off(S_T, S_T, FL_T3)}")
    set_flag(a, S_T, 1, 2, 3)
    a(f"{L}:")
```

```python
from wcommon import *
from t13 import fconst
C64, S64, N64 = 128, 144, 160
C32, S32, N32 = 176, 184, 192
WF = 200
TF = 64
TI = 96
S_J, S_WCOL, S_IMM, S_SC, S_RO, S_U = 40, 41, 42, 43, 44, 45
L_IN, L_EX = 0x0000, 0x4000
pat = lambda rho: (rho & 3) + 8 * (rho >> 2)

def params(a, stask):
    a(f"""s_lshr_b32 s{S_T}, s{S_W}, 1
s_and_b32 s{S_U}, s{S_W}, 1
s_lshl_b32 s{S_J}, s{stask}, 1
s_add_u32 s{S_J}, s{S_J}, s{S_T}
s_add_u32 s{S_J}, s{S_J}, 1
s_min_u32 s{S_J}, s{S_J}, 255
s_lshl_b32 s{S_T+1}, s{S_T}, 8
s_lshl_b32 s{S_T+2}, s{S_T}, 6
s_cmp_eq_u32 s{stask}, 128
s_cselect_b32 s{S_WCOL}, s{S_T+1}, s{S_J}
s_cselect_b32 s{S_J}, 0, s{S_J}
s_cselect_b32 s{S_IMM}, 0, -1
s_cselect_b32 s{S_RO}, s{S_T+2}, 0
s_mov_b32 s{S_SC}, {fconst(2.0**-19)}
s_cselect_b32 s{S_SC}, {fconst(2.0**-20)}, s{S_SC}""")

def issue_w(a):
    a(f"""s_load_dwordx2 s[{S_P}:{S_P+1}], s[0:1], {KA_WR}
s_load_dwordx2 s[{S_P+2}:{S_P+3}], s[0:1], {KA_WI}
v_and_b32 v2, 31, v{V_L}
s_lshl_b32 s{S_T}, s{S_U}, 5
v_add_u32 v2, s{S_T}, v2
v_lshrrev_b32 v3, 5, v{V_L}
v_lshl_add_u32 v2, v3, 8, v2
v_mul_u32_u24 v2, 514, v2
s_lshl_b32 s{S_T}, s{S_WCOL}, 1
v_add_u32 v2, s{S_T}, v2
s_waitcnt lgkmcnt(0)""")
    for rho in range(16):
        a(f"v_add_u32 v3, {pat(rho)*64*514}, v2")
        a(f"global_load_ushort v{WF+rho}, v3, s[{S_P}:{S_P+1}]\nglobal_load_ushort v{WF+16+rho}, v3, s[{S_P+2}:{S_P+3}]")

def gen_consts(a):
    st, ba = 2, 3
    def table(C, S, N, nks, scale, withu):
        a(f"v_and_b32 v{st}, 31, v{V_L}")
        if withu: a(f"s_lshl_b32 s{S_T}, s{S_U}, 5\nv_add_u32 v{st}, s{S_T}, v{st}")
        a(f"""v_cvt_f32_u32 v{st}, v{st}
v_mul_f32 v{st}, {fconst(scale)}, v{st}
v_lshrrev_b32 v{ba}, 5, v{V_L}
v_lshlrev_b32 v{ba}, 2, v{ba}
v_cvt_f32_u32 v{ba}, v{ba}
v_mul_f32 v{ba}, v{ba}, v{st}""")
        for ks in range(nks):
            for e in range(8):
                y = 16 * ks + pat(e)
                a(f"v_fmamk_f32 v{16+e}, v{st}, {fconst(y)}, v{ba}\nv_fract_f32 v{16+e}, v{16+e}\nv_cos_f32 v{8+e}, v{16+e}\nv_sin_f32 v{16+e}, v{16+e}")
            for p in range(4):
                a(f"v_cvt_pk_bf16_f32 v{C+4*ks+p}, v{8+2*p}, v{9+2*p}\nv_cvt_pk_bf16_f32 v{S+4*ks+p}, v{16+2*p}, v{17+2*p}\nv_xor_b32 v{N+4*ks+p}, 0x80008000, v{S+4*ks+p}")
    table(C64, S64, N64, 4, 1.0 / 64, True)
    table(C32, S32, N32, 2, 1.0 / 32, False)
    a(f"""v_and_b32 v{st}, 31, v{V_L}
s_lshl_b32 s{S_T}, s{S_U}, 5
v_add_u32 v{st}, s{S_T}, v{st}
v_cvt_f32_u32 v{st}, v{st}
v_mul_f32 v{st}, {fconst(1.0/2048)}, v{st}
v_lshrrev_b32 v{ba}, 5, v{V_L}
v_lshlrev_b32 v{ba}, 2, v{ba}
v_cvt_f32_u32 v{ba}, v{ba}
v_mul_f32 v{ba}, v{ba}, v{st}""")
    for rho in range(16):
        a(f"v_fmamk_f32 v{TF+16+rho}, v{st}, {fconst(pat(rho))}, v{ba}\nv_cos_f32 v{TF+rho}, v{TF+16+rho}\nv_sin_f32 v{TF+16+rho}, v{TF+16+rho}")
    a(f"""v_and_b32 v{st}, 31, v{V_L}
v_cvt_f32_u32 v{st}, v{st}
v_mul_f32 v{st}, {fconst(1.0/2048)}, v{st}
v_lshrrev_b32 v{ba}, 5, v{V_L}
v_lshlrev_b32 v{ba}, 2, v{ba}
v_add_u32 v{ba}, s{S_T}, v{ba}
v_cvt_f32_u32 v{ba}, v{ba}
v_mul_f32 v{ba}, v{ba}, v{st}""")
    for rho in range(16):
        a(f"v_fmamk_f32 v{TI+16+rho}, v{st}, {fconst(pat(rho))}, v{ba}\nv_cos_f32 v{TI+rho}, v{TI+16+rho}\nv_sin_f32 v{TI+16+rho}, v{TI+16+rho}")

def finish_w(a):
    for i in range(32): a(f"v_lshlrev_b32 v{WF+i}, 16, v{WF+i}\nv_mul_f32 v{WF+i}, s{S_SC}, v{WF+i}")

L_WST = 0x20000
def stash_w(a, store):
    a(f"s_lshl_b32 s{S_T}, s{S_W}, 13\ns_add_u32 s{S_T}, s{S_T}, {L_WST}\nv_add_u32 v2, s{S_T}, v{V_L16}")
    for i in range(8):
        a(f"ds_write_b128 v2, {vr(WF+4*i,4)} offset:{1024*i}" if store else f"ds_read_b128 {vr(WF+4*i,4)}, v2 offset:{1024*i}")
    a("s_waitcnt lgkmcnt(0)")

def run(a, stask):
    DR, DI = 16, 32
    XR, XI = 232, 48
    TT = 248
    va = 2
    a(f"""v_lshrrev_b32 v{va}, 3, v{V_L}
s_lshl_b32 s{S_T}, s{S_U}, 5
v_add_u32 v{va}, s{S_T}, v{va}
v_lshlrev_b32 v{va}, 15, v{va}
v_and_b32 v3, 7, v{V_L}
v_lshl_add_u32 v{va}, v3, 4, v{va}
s_lshl_b32 s{S_T}, s{S_J}, 7
v_add_u32 v{va}, s{S_T}, v{va}
{add64(S_P, S_WS, WS_Z)}
{add64(S_P+2, S_WS, WS_ZP)}
s_lshl_b32 s{S_T+1}, s{S_W}, 12
v_mov_b32 v3, v{va}""")
    for i in range(4):
        a(f"s_add_u32 m0, s{S_T+1}, {L_IN + i*1024}")
        if i: a(f"v_add_u32 v3, 0x40000, v3")
        a(f"global_load_lds_dwordx4 v3, s[{S_P}:{S_P+1}] sc1")
    a(f"""s_lshr_b32 s{S_T}, s{S_W}, 1
s_lshl_b32 s{S_T}, s{S_T}, 13
v_lshrrev_b32 v4, 5, v{V_L}
v_lshlrev_b32 v4, 2, v4
v_bfe_u32 v5, v{V_L}, 2, 2
v_add_u32 v4, v4, v5
v_lshlrev_b32 v4, 7, v4
v_bfe_u32 v5, v{V_L}, 4, 1
v_lshl_add_u32 v4, v5, 5, v4
v_and_b32 v5, 3, v{V_L}
v_lshl_add_u32 v4, v5, 3, v4
v_add_u32 v4, s{S_T}, v4
v_add_u32 v5, s{S_RO}, v4
v_add_u32 v6, s{S_T}, v{V_L16}
s_lshl_b32 s{S_T+2}, s{S_U}, 11
v_add_u32 v7, s{S_T+2}, v6
s_waitcnt vmcnt(0)
s_barrier""")
    for ks in range(4):
        for pp in range(2): a(f"ds_read_b64_tr_b16 {vr(XR+4*ks+2*pp,2)}, v5 offset:{L_IN + (16*ks+8*pp)*128}")
    a("s_waitcnt lgkmcnt(4)")
    for ks in range(4):
        for pp in range(2): a(f"ds_read_b64_tr_b16 {vr(XI+4*ks+2*pp,2)}, v4 offset:{L_IN + (16*ks+8*pp)*128 + 64}")
    def mm(d, x, y, first): return f"v_mfma_f32_32x32x16_bf16 {vr(d,16)}, {vr(x,4)}, {vr(y,4)}, {'0' if first else vr(d,16)}"
    def cstage(n, dataA, C, SR, SI):
        o = (lambda d, x, c, f: mm(d, x, c, f)) if dataA else (lambda d, x, c, f: mm(d, c, x, f))
        for ks in range(n): a(o(DR, XR + 4 * ks, C + 4 * ks, ks == 0)); a(o(DI, XR + 4 * ks, SI + 4 * ks, ks == 0))
        return [x for ks in range(n) for x in (o(DR, XI + 4 * ks, SR + 4 * ks, False), o(DI, XI + 4 * ks, C + 4 * ks, False))]
    def cmul_pack(cr, ci, conj):
        for i in range(16):
            t = 8 + (i & 7)
            if conj: a(f"v_mul_f32 v{t}, v{DI+i}, v{ci(i)}\nv_mul_f32 v{DI+i}, v{DI+i}, v{cr(i)}\nv_fma_f32 v{DI+i}, -v{DR+i}, v{ci(i)}, v{DI+i}\nv_fma_f32 v{DR+i}, v{DR+i}, v{cr(i)}, v{t}")
            else: a(f"v_mul_f32 v{t}, v{DI+i}, v{ci(i)}\nv_mul_f32 v{DI+i}, v{DI+i}, v{cr(i)}\nv_fma_f32 v{DI+i}, v{DR+i}, v{ci(i)}, v{DI+i}\nv_fma_f32 v{DR+i}, v{DR+i}, v{cr(i)}, -v{t}")
        for i in range(8):
            a(f"v_cvt_pk_bf16_f32 v{XR+i}, v{DR+2*i}, v{DR+2*i+1}\nv_cvt_pk_bf16_f32 v{XI+i}, v{DI+2*i}, v{DI+2*i+1}")
    a("s_waitcnt lgkmcnt(8)")
    rest = cstage(4, True, C64, S64, N64)
    a("s_waitcnt lgkmcnt(0)")
    for i in range(16): a(f"v_and_b32 v{XI+i}, s{S_IMM}, v{XI+i}")
    for x in rest: a(x)
    cmul_pack(lambda i: TF + i, lambda i: TF + 16 + i, True)
    for x in cstage(2, False, C32, S32, N32): a(x)
    cmul_pack(lambda i: WF + i, lambda i: WF + 16 + i, False)
    for x in cstage(2, True, C32, N32, S32): a(x)
    cmul_pack(lambda i: TI + i, lambda i: TI + 16 + i, False)
    for t in range(2):
        a(f"ds_write_b128 v7, {vr(XR+4*t,4)} offset:{L_EX + t*1024}\nds_write_b128 v7, {vr(XI+4*t,4)} offset:{L_EX + 4096 + t*1024}")
    a("s_waitcnt lgkmcnt(0)\ns_barrier")
    for ks in range(4): a(f"ds_read_b128 {vr(XR+4*ks,4)}, v6 offset:{L_EX + ks*1024}")
    for ks in range(4): a(f"ds_read_b128 {vr(XI+4*ks,4)}, v6 offset:{L_EX + 4096 + ks*1024}")
    a(f"""v_and_b32 v4, 31, v{V_L}
v_lshlrev_b32 v4, 7, v4
v_lshrrev_b32 v5, 5, v{V_L}
v_lshl_add_u32 v4, v5, 3, v4
v_add_u32 v4, s{S_T+1}, v4
v_add_u32 v5, s{S_T+1}, v{V_L16}
s_waitcnt lgkmcnt(4)""")
    rest = cstage(4, True, C64, N64, S64)
    a("s_waitcnt lgkmcnt(0)")
    for x in rest: a(x)
    TT = TF
    for i in range(8): a(f"v_cvt_pk_bf16_f32 v{TT+i}, v{DR+2*i}, v{DR+2*i+1}")
    for i in range(8): a(f"v_cvt_pk_bf16_f32 v{TT+8+i}, v{DI+2*i}, v{DI+2*i+1}")
    for q in range(4):
        a(f"ds_write_b64 v4, {vr(TT+2*q,2)} offset:{L_IN + 16*q}\nds_write_b64 v4, {vr(TT+8+2*q,2)} offset:{L_IN + 64 + 16*q}")
    a(f"""s_or_b32 s{S_T+4}, s{S_IMM}, 0x0f0f0f0f
s_mov_b32 s{S_T+5}, s{S_T+4}
v_add_u32 v{va}, s{S_RO}, v{va}
s_waitcnt lgkmcnt(0)""")
    for i in range(4): a(f"ds_read_b128 {vr(DR+4*i,4)}, v5 offset:{L_IN + i*1024}")
    a(f"s_mov_b64 exec, s[{S_T+4}:{S_T+5}]")
    for i in range(4):
        a(f"s_waitcnt lgkmcnt({3-i})\nglobal_store_dwordx4 v{va}, {vr(DR+4*i,4)}, s[{S_P+2}:{S_P+3}] sc1")
        if i < 3: a(f"v_add_u32 v{va}, 0x40000, v{va}")
    L = a.label("L_t2f")
    a(f"s_mov_b64 exec, -1\ns_waitcnt vmcnt(0)\ns_barrier\ns_cmp_lg_u32 s{S_W}, 0\ns_cbranch_scc1 {L}\n{flag_off(S_T, stask, FL_T2)}")
    a(f"v_lshl_add_u32 v2, v{V_L}, 2, s{S_T}\nv_mov_b32 v3, 1\ns_cmp_eq_u32 s{stask}, 128\ns_cselect_b64 exec, 15, 1\nglobal_store_dword v2, v3, s[{S_FLG}:{S_FLG+1}] sc1\ns_mov_b64 exec, -1")
    a(f"{L}:")
```

```python
from wcommon import *
ONES = 0x3f803f80
CS = 248
S_M, S_HD, S_HF = 46, 47, 48
L_RAW = 0x10000
L_RB = 0x8000
def wreg(tile, ks): return ar(128 * tile + 4 * ks, 4)

def params(a):
    a(f"s_lshr_b32 s{S_M}, s{S_C}, 6\ns_bfe_u32 s{S_HD}, s{S_C}, 0x50001\ns_and_b32 s{S_HF}, s{S_C}, 1")

def load_w_issue(a):
    a(f"""s_cmp_eq_u32 s{S_M}, 0
s_cselect_b32 s{S_T}, {KA_WK}, {KA_WV}
s_cmp_eq_u32 s{S_M}, 2
s_cselect_b32 s{S_T}, {KA_WQ}, s{S_T}
s_load_dwordx2 s[{S_P+4}:{S_P+5}], s[0:1], s{S_T}
v_lshrrev_b32 v2, 3, v{V_L}
s_lshl_b32 s{S_T}, s{S_W}, 7
v_add_u32 v2, s{S_T}, v2
v_lshlrev_b32 v2, 13, v2
v_and_b32 v3, 7, v{V_L}
v_lshl_add_u32 v2, v3, 4, v2
s_and_b32 s{S_T}, s{S_C}, 63
s_lshl_b32 s{S_T}, s{S_T}, 7
v_add_u32 v2, s{S_T}, v2
s_lshl_b32 s{S_T}, s{S_W}, 14
s_waitcnt lgkmcnt(0)""")
    for i in range(16):
        a(f"s_add_u32 m0, s{S_T}, {L_RAW + i*1024}")
        if i: a("v_add_u32 v2, 0x10000, v2")
        a(f"global_load_lds_dwordx4 v2, s[{S_P+4}:{S_P+5}]")

def load_w_finish(a):
    a(f"""v_lshrrev_b32 v4, 5, v{V_L}
v_lshlrev_b32 v4, 3, v4
v_bfe_u32 v5, v{V_L}, 2, 2
v_add_u32 v4, v4, v5
v_lshlrev_b32 v4, 7, v4
v_bfe_u32 v5, v{V_L}, 4, 1
v_lshl_add_u32 v4, v5, 5, v4
v_and_b32 v5, 3, v{V_L}
v_lshl_add_u32 v4, v5, 3, v4
v_add_u32 v4, {L_RAW}, v4
s_barrier""")
    n = 0
    for ks in range(32):
        for tile in range(2):
            for pp in range(2):
                a(f"ds_read_b64_tr_b16 {ar(128*tile+4*ks+2*pp,2)}, v4 offset:{(16*ks+4*pp)*128 + tile*64}")
                n += 1
                if n % 12 == 0: a("s_waitcnt lgkmcnt(2)")
    a("s_waitcnt lgkmcnt(0)\ns_barrier")

def colsum(a):
    for j in range(4): a(f"v_mov_b32 v{8+j}, {hex(ONES)}")
    for tile in range(2):
        for ks in range(32):
            a(f"v_mfma_f32_32x32x16_bf16 {vr(16+16*tile,16)}, v[8:11], {wreg(tile,ks)}, {'0' if ks == 0 else vr(16+16*tile,16)}")
    a(f"v_cmp_gt_u32 vcc, 32, v{V_L}")
    for tile in range(2):
        c = 16 + 16 * tile; o = CS + 4 * tile
        a(f"""v_cvt_pk_bf16_f32 v8, v{c}, v{c}
v_lshlrev_b32 v9, 16, v8
v_sub_f32 v10, v{c}, v9
v_cvt_pk_bf16_f32 v11, v9, v10
v_and_b32 v12, 0xffff0000, v11
v_sub_f32 v10, v10, v12
v_cvt_pk_bf16_f32 v12, v10, 0
v_cndmask_b32 v{o}, 0, v11, vcc
v_cndmask_b32 v{o+1}, 0, v12, vcc
v_mov_b64 {vr(o+2,2)}, 0""")

def loop(a, isv):
    XF, ACC, ST, MX, RB, PK = 64, 16, 48, 56, 192, 208
    VA, VF, VR = 2, 3, 4
    L_top, L_end = a.label("L_t4"), a.label("L_t4e")
    SX, SO, SS, SFO = S_P, S_P + 2, S_P + 6, S_P + 8
    SN = S_P + 9
    if isv:
        a(f"""v_bfe_u32 v{VA}, v{V_L}, 4, 1
v_lshlrev_b32 v{VA}, 10, v{VA}
v_lshrrev_b32 v5, 5, v{V_L}
v_lshl_add_u32 v{VA}, v5, 8, v{VA}
v_and_b32 v5, 15, v{V_L}
v_lshl_add_u32 v{VA}, v5, 4, v{VA}
s_lshl_b32 s{S_T}, s{S_HD}, 14
s_lshl_b32 s{S_T+1}, s{S_HF}, 13
s_add_u32 s{S_T}, s{S_T}, s{S_T+1}
s_add_u32 s{S_T}, s{S_T}, {WS_KV + 2048 + 2048}
s_mov_b32 s{SN+1}, 0x200000
s_lshl_b32 s{S_T+1}, s{S_W}, 19""")
        offs = [[-2048, -2048 + 512], [2048, 2048 + 512]]
    else:
        a(f"""v_bfe_u32 v{VA}, v{V_L}, 4, 1
v_lshlrev_b32 v{VA}, 13, v{VA}
v_bfe_u32 v5, v{V_L}, 2, 1
v_lshl_add_u32 v{VA}, v5, 12, v{VA}
v_lshrrev_b32 v5, 5, v{V_L}
v_lshl_add_u32 v{VA}, v5, 8, v{VA}
v_bfe_u32 v5, v{V_L}, 3, 1
v_lshl_add_u32 v{VA}, v5, 6, v{VA}
v_and_b32 v5, 3, v{V_L}
v_lshl_add_u32 v{VA}, v5, 4, v{VA}
s_lshl_b32 s{S_T}, s{S_HD}, 14
s_lshl_b32 s{S_T+1}, s{S_HF}, 10
s_add_u32 s{S_T}, s{S_T}, s{S_T+1}
s_add_u32 s{S_T}, s{S_T}, {WS_KV}
s_lshl_b32 s{S_T+2}, s{S_HD}, 13
s_lshl_b32 s{S_T+1}, s{S_HF}, 12
s_add_u32 s{S_T+2}, s{S_T+2}, s{S_T+1}
s_add_u32 s{S_T+2}, s{S_T+2}, {WS_QX}
s_cmp_eq_u32 s{S_M}, 2
s_cselect_b32 s{S_T}, s{S_T+2}, s{S_T}
s_cselect_b32 s{S_T+3}, 18, 19
s_cselect_b32 s{S_T+4}, 3, 0
s_cselect_b32 s{S_T+5}, 2, 0
s_cselect_b64 vcc, -1, 0
s_lshl_b32 s{SN+1}, 4, s{S_T+3}
s_lshl_b32 s{S_T+1}, s{S_W}, s{S_T+3}
v_cndmask_b32 v{VA}, v{VA}, v{V_L16}, vcc
s_lshl_b32 s{S_T+4}, 128, s{S_T+4}
s_lshl_b32 s{S_T+5}, 512, s{S_T+5}
v_add_u32 v5, s{S_T+4}, v{VA}
v_add_u32 v6, s{S_T+5}, v{VA}
v_add_u32 v7, s{S_T+5}, v5""")
    a(f"""s_add_u32 s{S_T}, s{S_T}, s{S_T+1}
{add64(SO, S_WS, f's{S_T}')}
s_lshl_b32 s{S_T}, s{S_W}, 15
s_add_u32 s{S_T}, s{S_T}, {WS_XA + 4096}
{add64(SX, S_WS, f's{S_T}')}
s_lshl_b32 s{S_T}, s{S_W}, 10
s_add_u32 s{S_T}, s{S_T}, {WS_STATS}
{add64(SS, S_WS, f's{S_T}')}
s_lshl_b32 s{SFO}, s{S_HD}, 10
s_lshl_b32 s{S_T}, s{S_M}, 8
s_add_u32 s{SFO}, s{SFO}, s{S_T}
s_lshl_b32 s{S_T}, s{S_HF}, 7
s_add_u32 s{SFO}, s{SFO}, s{S_T}
s_lshl_b32 s{S_T}, s{S_W}, 2
s_add_u32 s{SFO}, s{SFO}, s{S_T}
s_add_u32 s{SFO}, s{SFO}, {FL_HD}
s_lshl_b32 s{S_T}, s{S_W}, 7
s_add_u32 s{S_T}, s{S_T}, {FL_T3}
v_mov_b32 v{VF}, s{S_T}
v_and_b32 v{VR}, 31, v{V_L}
v_lshlrev_b32 v{VR}, 3, v{VR}
v_add_u32 v8, 0x2000, v{V_L16}
v_add_u32 v9, 0x4000, v{V_L16}
v_add_u32 v10, 0x6000, v{V_L16}
s_lshl_b32 s{S_T}, s{S_W}, 7
s_add_u32 s{S_T}, s{S_T}, {L_RB}
v_lshrrev_b32 v11, 1, v{VR}
v_add_u32 v11, s{S_T}, v11
v_lshrrev_b32 v12, 5, v{V_L}
v_lshl_add_u32 v12, v12, 4, s{S_T}
v_mov_b64 {vr(MX+2,2)}, 0
s_mov_b32 s{SN}, 0
{L_top}:""")
    wait_words(a, VF, 4, ST, 1, execmask="1")
    for q in range(4): a(f"global_load_dwordx2 {vr(ST+2*q,2)}, v{VR}, s[{SS}:{SS+1}] offset:{256*q} sc1")
    for ks in range(32):
        va = [V_L16, 8, 9, 10][ks >> 3]
        a(f"global_load_dwordx4 {vr(XF+4*ks,4)}, v{va}, s[{SX}:{SX+1}] offset:{(ks&7)*1024-4096} sc1")
    a("s_waitcnt vmcnt(32)")
    a(f"v_pk_add_f32 {vr(ST,2)}, {vr(ST,2)}, {vr(ST+2,2)}\nv_pk_add_f32 {vr(ST+4,2)}, {vr(ST+4,2)}, {vr(ST+6,2)}\nv_pk_add_f32 {vr(ST,2)}, {vr(ST,2)}, {vr(ST+4,2)}")
    ln_stats(a, ST, ST + 1, ST + 2, ST + 3, ST + 4)
    R = ST + 3
    a(f"""v_xor_b32 v{ST+2}, 0x80000000, v{ST+2}
v_lshrrev_b32 v{MX+1}, 16, v{ST+2}
v_or_b32 v{MX}, v{MX+1}, v{ST+2}""")
    if isv:
        a(f"ds_write_b32 v11, v{R}")
        for q in range(4): a(f"ds_read_b128 {vr(RB+4*q,4)}, v12 offset:{32*q}")
    def mm(tile, w, x, first):
        d = vr(ACC + 16 * tile, 16)
        return f"v_mfma_f32_32x32x16_bf16 {d}, {x}, {w}, {'0' if first else d}" if isv else f"v_mfma_f32_32x32x16_bf16 {d}, {w}, {x}, {'0' if first else d}"
    for tile in range(2): a(mm(tile, vr(CS + 4 * tile, 4), vr(MX, 4), True))
    for ks in range(32):
        a(f"s_waitcnt vmcnt({31-ks})")
        for tile in range(2): a(mm(tile, wreg(tile, ks), vr(XF + 4 * ks, 4), False))
    a(f"""{add64(SX, SX, '0x20000')}
{add64(SS, SS, '0x1000')}
v_add_u32 v{VF}, 0x200, v{VF}
s_add_u32 s{SN}, s{SN}, 1
s_waitcnt lgkmcnt(0)""")
    for tile in range(2):
        for i in range(16):
            c = ACC + 16 * tile + i
            a(f"v_mul_f32 v{c}, v{c}, v{RB+i if isv else R}")
        for i in range(8): a(f"v_cvt_pk_bf16_f32 v{PK+8*tile+i}, v{ACC+16*tile+2*i}, v{ACC+16*tile+2*i+1}")
        for gb in range(2):
            if isv: a(f"global_store_dwordx4 v{VA}, {vr(PK+8*tile+4*gb,4)}, s[{SO}:{SO+1}] offset:{offs[tile][gb]} sc1")
            else: a(f"global_store_dwordx4 v{[VA,5,6,7][2*tile+gb]}, {vr(PK+8*tile+4*gb,4)}, s[{SO}:{SO+1}] sc1")
    a(f"{add64(SO, SO, f's{SN+1}')}\ns_waitcnt vmcnt(0)")
    set_flag(a, SFO, f"s{SN}", ST, ST + 1)
    a(f"s_cmp_lt_u32 s{SN}, 16\ns_cbranch_scc1 {L_top}")
```

```python
from wcommon import *
S_G, S_HG, S_CH, S_MEMB = 50, 51, 52, 53
S_SC2 = 54
L_O, L_KM, L_RING = 0x0000, 0x8000, 0x10000
MASK = 240
pat = lambda rho: (rho & 3) + 8 * (rho >> 2)
def wreg(tile, ks): return ar(128 * tile + 4 * ks, 4)

def params(a):
    a(f"s_lshr_b32 s{S_G}, s{S_C}, 4\ns_and_b32 s{S_MEMB}, s{S_C}, 15\ns_and_b32 s{S_HG}, s{S_C}, 7\ns_bfe_u32 s{S_CH}, s{S_C}, 0x10003")

def load_wo(a):
    a(f"""s_load_dwordx2 s[{S_P+4}:{S_P+5}], s[0:1], {KA_WO}
v_lshrrev_b32 v2, 3, v{V_L}
s_lshl_b32 s{S_T}, s{S_HG}, 9
v_add_u32 v2, s{S_T}, v2
v_lshlrev_b32 v2, 10, v2
v_and_b32 v3, 7, v{V_L}
v_lshl_add_u32 v2, v3, 4, v2
s_lshl_b32 s{S_T}, s{S_CH}, 9
s_lshl_b32 s{S_T+1}, s{S_W}, 7
s_add_u32 s{S_T}, s{S_T}, s{S_T+1}
v_add_u32 v2, s{S_T}, v2
s_lshl_b32 s{S_T}, s{S_W}, 14
s_add_u32 s{S_T}, s{S_T}, {L_RING}
v_lshrrev_b32 v4, 5, v{V_L}
v_lshlrev_b32 v4, 2, v4
v_bfe_u32 v5, v{V_L}, 2, 2
v_add_u32 v4, v4, v5
v_lshlrev_b32 v4, 7, v4
v_bfe_u32 v5, v{V_L}, 4, 1
v_lshl_add_u32 v4, v5, 5, v4
v_and_b32 v5, 1, v{V_L}
v_lshl_add_u32 v4, v5, 4, v4
v_bfe_u32 v5, v{V_L}, 1, 1
v_lshl_add_u32 v4, v5, 3, v4
v_add_u32 v4, s{S_T}, v4
s_waitcnt lgkmcnt(0)""")
    def dma(n):
        for i in range(4):
            a(f"s_add_u32 m0, s{S_T}, {(n%4)*4096 + i*1024}")
            if n or i: a("v_add_u32 v2, 0x2000, v2")
            a(f"global_load_lds_dwordx4 v2, s[{S_P+4}:{S_P+5}]")
    for n in range(4): dma(n)
    for n in range(16):
        a(f"s_waitcnt vmcnt({4*min(15-n, 3)})")
        for gb in range(2):
            for tile in range(2):
                for pp in range(2):
                    a(f"ds_read_b64_tr_b16 {ar(128*tile+4*(2*n+gb)+2*pp,2)}, v4 offset:{(n%4)*4096 + (16*gb+8*pp)*128 + tile*64}")
        a("s_waitcnt lgkmcnt(0)")
        if n + 4 < 16: dma(n + 4)
    a(f"v_and_b32 v2, 31, v{V_L}\nv_lshrrev_b32 v3, 5, v{V_L}\nv_lshlrev_b32 v3, 2, v3\nv_sub_u32 v2, v2, v3\nv_mov_b32 v3, 0xff800000")
    for rho in range(16):
        a(f"v_cmp_gt_i32 vcc, {pat(rho)}, v2\nv_cndmask_b32 v{MASK+rho}, 0, v3, vcc")
    a(f"s_mov_b32 s{S_SC2}, 0x3e0293ee")

def loop(a):
    Q_, K_, V_, KMF, SX, S0, S1, OT, VMF = 16, 48, 80, 112, 128, 144, 160, 176, 8
    VK, VV, VFL, VTH, VT, VM = 2, 3, 4, 5, 6, 7
    PQ, PK, PM, PP, PX = S_P, S_P + 2, S_P + 4, S_P + 6, S_P + 8
    L_top, L_end = a.label("L_t5"), a.label("L_t5e")
    a(f"""s_sub_u32 s{S_SEG}, s{S_G}, 1
s_cmp_eq_u32 s{S_G}, 0
s_cselect_b32 s{S_SEG}, 12, s{S_SEG}
{L_top}:
v_bfe_u32 v{VK}, v{V_L}, 4, 1
v_lshlrev_b32 v{VK}, 13, v{VK}
v_bfe_u32 v{VT}, v{V_L}, 2, 1
v_lshl_add_u32 v{VK}, v{VT}, 12, v{VK}
v_lshrrev_b32 v{VT}, 5, v{V_L}
v_lshl_add_u32 v{VK}, v{VT}, 8, v{VK}
v_lshlrev_b32 v{VV}, 8, v{VT}
v_bfe_u32 v{VT}, v{V_L}, 3, 1
v_lshl_add_u32 v{VK}, v{VT}, 6, v{VK}
v_and_b32 v{VT}, 3, v{V_L}
v_lshl_add_u32 v{VK}, v{VT}, 4, v{VK}
v_bfe_u32 v{VT}, v{V_L}, 4, 1
v_lshl_add_u32 v{VV}, v{VT}, 10, v{VV}
v_and_b32 v{VT}, 15, v{V_L}
v_lshl_add_u32 v{VV}, v{VT}, 4, v{VV}
v_add_u32 v{VV}, 0x1000, v{VV}
s_lshl_b32 s{S_T}, s{S_HG}, 2
s_add_u32 s{S_T}, s{S_T}, s{S_W}
s_lshl_b32 s{S_T+1}, s{S_SEG}, 5
s_add_u32 s{S_T+1}, s{S_T+1}, s{S_T}
s_lshl_b32 s{S_T+2}, s{S_T+1}, 13
s_add_u32 s{S_T+2}, s{S_T+2}, {WS_QX + 4096}
{add64(PQ, S_WS, f's{S_T+2}')}
s_lshl_b32 s{S_T+2}, s{S_T+1}, 14
s_add_u32 s{S_T+2}, s{S_T+2}, {WS_KV}
{add64(PK, S_WS, f's{S_T+2}')}
s_lshl_b32 s{S_T+2}, s{S_T+1}, 12
s_add_u32 s{S_T+2}, s{S_T+2}, {WS_KM}
{add64(PM, S_WS, f's{S_T+2}')}
s_lshl_b32 s{S_T}, s{S_T}, 10
s_add_u32 s{S_T}, s{S_T}, {FL_HD}
s_and_b32 s{S_T+1}, s{S_SEG}, 3
s_lshl_b32 s{S_T+1}, s{S_T+1}, 2
s_add_u32 s{S_T+1}, s{S_T+1}, s{S_T}
{lines_addr(VFL, f's{S_T+1}')}
s_lshr_b32 s{S_T+2}, s{S_SEG}, 2
s_add_u32 s{S_T+2}, s{S_T+2}, 1""")
    wait_words(a, VFL, 1, VT, f"s{S_T+2}", execmask="63", sleep=4)
    for ks in range(8): a(f"global_load_dwordx4 {vr(Q_+4*ks,4)}, v{V_L16}, s[{PQ}:{PQ+1}] offset:{ks*1024-4096} sc1")
    for ks in range(8):
        wp, gb = ks >> 1, ks & 1
        a(f"global_load_dwordx4 {vr(K_+4*ks,4)}, v{VK}, s[{PK}:{PK+1}] offset:{(wp>>1)*1024 + (wp&1)*512 + gb*128} sc1")
    for wp in range(4):
        if wp == 2: a(f"v_add_u32 v{VV}, 0x2000, v{VV}")
        for gb in range(2):
            a(f"global_load_dwordx4 {vr(V_+8*wp+4*gb,4)}, v{VV}, s[{PK}:{PK+1}] offset:{(wp&1)*4096 - 2048 + gb*512} sc1")
    a("s_waitcnt vmcnt(8)")
    for ks in range(8):
        a(f"v_mfma_f32_32x32x16_bf16 {vr(SX,16)}, {vr(K_+4*ks,4)}, {vr(Q_+4*ks,4)}, {vr(MASK,16) if ks == 0 else vr(SX,16)}")
    a(f"""v_mov_b32 v{VFL}, s{S_T}
s_add_u32 s{S_T+2}, s{S_SEG}, 1
s_lshl_b32 s{S_T+3}, s{S_W}, 12
s_add_u32 s{S_T+3}, s{S_T+3}, {L_KM}
v_and_b32 v{VK}, 3, v{V_L}
v_lshlrev_b32 v{VK}, 6, v{VK}
v_lshrrev_b32 v{VT}, 5, v{V_L}
v_lshl_add_u32 v{VK}, v{VT}, 5, v{VK}
v_lshlrev_b32 v{VM}, 6, v{VT}
v_bfe_u32 v{VT}, v{V_L}, 2, 2
v_lshl_add_u32 v{VK}, v{VT}, 3, v{VK}
v_add_u32 v{VK}, s{S_T+3}, v{VK}
v_bfe_u32 v{VT}, v{V_L}, 3, 1
v_lshl_add_u32 v{VM}, v{VT}, 8, v{VM}
v_and_b32 v{VT}, 7, v{V_L}
v_lshl_add_u32 v{VM}, v{VT}, 3, v{VM}
v_bfe_u32 v{VT}, v{V_L}, 4, 1
v_lshl_add_u32 v{VM}, v{VT}, 2, v{VM}
v_add_u32 v{VM}, s{S_T+3}, v{VM}
v_add_u32 v{VM}, 0x800, v{VM}""")
    wait_words(a, VFL, 4, 8, f"s{S_T+2}", execmask="1", off=768, sleep=1)
    a(f"s_mov_b32 m0, s{S_T+3}")
    for i in range(4): a(f"global_load_lds_dwordx4 v{V_L16}, s[{PM}:{PM+1}] offset:{i*1024} sc1")
    M, T, LS = VTH, VT, VFL
    a(f"v_max3_f32 v{M}, v{SX}, v{SX+1}, v{SX+2}")
    for i in range(3, 15, 2): a(f"v_max3_f32 v{M}, v{M}, v{SX+i}, v{SX+i+1}")
    a(f"v_max_f32 v{M}, v{M}, v{SX+15}\ns_waitcnt vmcnt(0)")
    for wp in range(4):
        for pp in range(2): a(f"ds_read_b64_tr_b16 {vr(KMF+4*wp+2*pp,2)}, v{VK} offset:{wp*512 + pp*256}")
    a(f"v_add_u32 v{VK}, 0x400, v{VM}")
    for wp in range(4): a(f"ds_read2_b32 {vr(VMF+2*wp,2)}, v{VM if wp < 2 else VK} offset0:{(wp&1)*128} offset1:{(wp&1)*128+32}")
    for wp in range(4):
        a(f"s_waitcnt lgkmcnt({10-2*wp})")
        for gb, S in ((0, S0), (1, S1)):
            a(f"v_mfma_f32_32x32x16_bf16 {vr(S,16)}, {vr(KMF+4*wp,4)}, {vr(Q_+4*(2*wp+gb),4)}, {'0' if wp == 0 else vr(S,16)}")
    SMv = [S0, S0 + 1, S0 + 4, S0 + 5]
    for x in SMv: a(f"v_add_f32 v{x}, v{x}, v{S1 + (x - S0) + 2}")
    a(f"""v_max3_f32 v{M}, v{M}, v{SMv[0]}, v{SMv[1]}
v_max3_f32 v{M}, v{M}, v{SMv[2]}, v{SMv[3]}
v_mov_b32 v{T}, v{M}
v_permlane32_swap_b32 v{M}, v{T}
v_max_f32 v{M}, v{M}, v{T}
v_mul_f32 v{M}, s{S_SC2}, v{M}""")
    allv = [SX + i for i in range(16)] + SMv
    for x in allv: a(f"v_fma_f32 v{x}, v{x}, s{S_SC2}, -v{M}")
    for x in allv: a(f"v_exp_f32 v{x}, v{x}")
    a(f"v_add_f32 v{LS}, v{allv[0]}, v{allv[1]}\nv_add_f32 v{T}, v{allv[2]}, v{allv[3]}")
    for i in range(4, 20, 2): a(f"v_add_f32 v{LS}, v{LS}, v{allv[i]}\nv_add_f32 v{T}, v{T}, v{allv[i+1]}")
    a(f"""v_add_f32 v{LS}, v{LS}, v{T}
v_mov_b32 v{T}, v{LS}
v_permlane32_swap_b32 v{LS}, v{T}
v_add_f32 v{LS}, v{LS}, v{T}
v_rcp_f32 v{LS}, v{LS}""")
    for x in allv: a(f"v_mul_f32 v{x}, v{x}, v{LS}")
    P = K_
    for i in range(10): a(f"v_cvt_pk_bf16_f32 v{P+i}, v{allv[2*i]}, v{allv[2*i+1]}")
    a("s_waitcnt lgkmcnt(0)")
    for wp in range(4):
        d = vr(OT + 16 * wp, 16)
        a(f"v_mfma_f32_32x32x8_bf16 {d}, {vr(VMF+2*wp,2)}, {vr(P+8,2)}, 0")
        for gb in range(2): a(f"v_mfma_f32_32x32x16_bf16 {d}, {vr(V_+8*wp+4*gb,4)}, {vr(P+4*gb,4)}, {d}")
    a(f"s_lshl_b32 s{S_T+3}, s{S_W}, 13\nv_add_u32 v{VK}, s{S_T+3}, v{V_L16}")
    for wp in range(4):
        for i in range(8): a(f"v_cvt_pk_bf16_f32 v{Q_+8*wp+i}, v{OT+16*wp+2*i}, v{OT+16*wp+2*i+1}")
        for gb in range(2): a(f"ds_write_b128 v{VK}, {vr(Q_+8*wp+4*gb,4)} offset:{L_O + (2*wp+gb)*1024}")
    a(f"""s_lshl_b32 s{S_T}, s{S_SEG}, 18
s_lshl_b32 s{S_T+1}, s{S_HG}, 15
s_add_u32 s{S_T+1}, s{S_T+1}, s{S_T}
s_lshl_b32 s{S_T+2}, s{S_CH}, 14
s_add_u32 s{S_T+1}, s{S_T+1}, s{S_T+2}
s_lshl_b32 s{S_T+2}, s{S_W}, 12
s_add_u32 s{S_T+1}, s{S_T+1}, s{S_T+2}
s_add_u32 s{S_T+1}, s{S_T+1}, {WS_PART}
{add64(PP, S_WS, f's{S_T+1}')}
s_waitcnt lgkmcnt(0)
s_barrier""")
    FB, ACC = 48, 128
    Qs = Seq()
    rd = lambda ks: (f"ds_read_b128 {vr(FB+4*(ks%8),4)}, v{V_L16} offset:{L_O + ks*1024}", f"f{ks}")
    for k in range(7): Qs.add(rd(k))
    for ks in range(32):
        if ks + 7 < 32: Qs.add(rd(ks + 7))
        Qs.add(WL(f"f{ks}"))
        for tile in range(2):
            d = vr(ACC + 16 * tile, 16)
            Qs.add(f"v_mfma_f32_32x32x16_bf16 {d}, {wreg(tile,ks)}, {vr(FB+4*(ks%8),4)}, {'0' if ks == 0 else d}")
    for x in Qs.resolve(): a(x)
    for tile in range(2):
        for i in range(8): a(f"v_cvt_pk_bf16_f32 v{Q_+8*tile+i}, v{ACC+16*tile+2*i}, v{ACC+16*tile+2*i+1}")
        for t in range(2): a(f"global_store_dwordx4 v{V_L16}, {vr(Q_+8*tile+4*t,4)}, s[{PP}:{PP+1}] offset:{(2*tile+t)*1024} sc1")
    L_skip, L_nf = a.label("L_r2s"), a.label("L_r2n")
    a(f"""s_waitcnt vmcnt(0)
s_barrier
s_cmp_ge_u32 s{S_W}, 2
s_cbranch_scc1 {L_skip}
s_lshl_b32 s{S_T+4}, s{S_SEG}, 9
s_add_u32 s{S_T+4}, s{S_T+4}, {FL_T5}
s_cmp_lg_u32 s{S_W}, 0
s_cbranch_scc1 {L_nf}
{flag_off(S_T+1, S_MEMB, f's{S_T+4}')}""")
    set_flag(a, S_T + 1, 1, 2, 3)
    a(f"""{L_nf}:
s_lshl_b32 s{S_T+5}, s{S_MEMB}, 1
s_add_u32 s{S_T+5}, s{S_T+5}, s{S_W}
s_lshl_b32 s{S_T+1}, s{S_T+5}, 10
s_lshl_b32 s{S_T+2}, s{S_SEG}, 15
s_add_u32 s{S_T+2}, s{S_T+2}, s{S_T+1}
s_add_u32 s{S_T+3}, s{S_T+2}, {WS_XA}
{add64(PX, S_WS, f's{S_T+3}')}
global_load_dwordx4 v[48:51], v{V_L16}, s[{PX}:{PX+1}] sc1
s_add_u32 s{S_T+1}, s{S_T+1}, s{S_T}
s_add_u32 s{S_T+1}, s{S_T+1}, {WS_PART}
{add64(PP, S_WS, f's{S_T+1}')}
s_lshl_b32 s{S_T+1}, s{S_CH}, 8
s_add_u32 s{S_T+1}, s{S_T+1}, s{S_T+4}
{lines_addr(VFL, f's{S_T+1}')}""")
    wait_words(a, VFL, 4, 8, 1, execmask="3", sleep=0)
    a(f"v_mov_b32 v2, v{V_L16}")
    for g in range(8):
        a(f"global_load_dwordx4 {vr(16+4*g,4)}, v2, s[{PP}:{PP+1}] sc1")
        if g < 7: a("v_add_u32 v2, 0x8000, v2")
    a(f"s_mov_b32 s{S_T+3}, 0xffff0000")
    a(f"""s_load_dwordx2 s[{PX}:{PX+1}], s[0:1], {KA_OUT}
s_add_u32 s{S_T+2}, s{S_T+2}, {LSTRIDE + WS_XIN}
s_lshl_b32 s{S_T+1}, s{S_SEG}, 15
s_lshl_b32 s{S_T+6}, s{S_T+5}, 5
s_add_u32 s{S_T+1}, s{S_T+1}, s{S_T+6}
v_and_b32 v3, 31, v{V_L}
v_lshlrev_b32 v3, 10, v3
v_lshrrev_b32 v4, 5, v{V_L}
v_lshl_add_u32 v3, v4, 4, v3
s_cmp_eq_u32 s{S_LAY}, 0
s_cselect_b64 vcc, -1, 0
s_cselect_b32 s{S_T+2}, s{S_T+2}, s{S_T+1}
s_waitcnt lgkmcnt(0)
s_cselect_b64 s[{PX}:{PX+1}], s[{S_WS}:{S_WS+1}], s[{PX}:{PX+1}]
{add64(PX, PX, f's{S_T+2}')}
v_cndmask_b32 v3, v3, v{V_L16}, vcc""")
    A, B = 64, 72
    for g in range(8):
        a(f"s_waitcnt vmcnt({7-g})")
        d = A if g == 0 else B
        for j in range(4): a(f"v_lshlrev_b32 v{d+2*j}, 16, v{16+4*g+j}\nv_and_b32 v{d+2*j+1}, s{S_T+3}, v{16+4*g+j}")
        if g:
            for j in range(4): a(f"v_pk_add_f32 {vr(A+2*j,2)}, {vr(A+2*j,2)}, {vr(B+2*j,2)}")
    for j in range(4): a(f"v_cvt_pk_bf16_f32 v{16+j}, v{A+2*j}, v{A+2*j+1}")
    for j in range(4):
        a(f"v_lshlrev_b32 v{A+2*j}, 16, v{16+j}\nv_and_b32 v{A+2*j+1}, s{S_T+3}, v{16+j}\nv_lshlrev_b32 v{B+2*j}, 16, v{48+j}\nv_and_b32 v{B+2*j+1}, s{S_T+3}, v{48+j}")
    for j in range(4): a(f"v_pk_add_f32 {vr(A+2*j,2)}, {vr(A+2*j,2)}, {vr(B+2*j,2)}")
    for j in range(4): a(f"v_cvt_pk_bf16_f32 v{16+j}, v{A+2*j}, v{A+2*j+1}")
    L_o = a.label("L_r2o")
    a(f"""s_cmp_eq_u32 s{S_LAY}, 0
s_cbranch_scc0 {L_o}
global_store_dwordx4 v3, v[16:19], s[{PX}:{PX+1}] sc1
{flag_off(S_T+1, S_T+5, LSTRIDE + FL_R2)}
s_lshl_b32 s{S_T+2}, s{S_SEG}, 10
s_add_u32 s{S_T+1}, s{S_T+1}, s{S_T+2}
s_waitcnt vmcnt(0)""")
    set_flag(a, S_T + 1, 1, 2, 3)
    a(f"s_branch {L_skip}\n{L_o}:\nglobal_store_dwordx4 v3, v[16:19], s[{PX}:{PX+1}]")
    a(f"""{L_skip}:
s_add_u32 s{S_SEG}, s{S_SEG}, 13
s_cmp_lt_u32 s{S_SEG}, 64
s_cbranch_scc1 {L_top}""")
```

```python
from asmlib import *
from layout import *
S_WS, S_DBG = 4, 6
S_C, S_W = 8, 9
S_CNT = 10
S_FLG = S_WS
S_LAY = 11
S_SEG = 14
S_OK = 15
S_T = 16
S_P = 32
V_L16, V_L = 0, 1
TMO = 400000

def add64(d, s, off):
    return f"s_add_u32 s{d}, s{s}, {off}\ns_addc_u32 s{d+1}, s{s+1}, 0"

def timeout():
    return f"s_add_u32 s{S_CNT}, s{S_CNT}, 1\ns_cmp_gt_u32 s{S_CNT}, {TMO}\ns_cbranch_scc1 L_fail"

def wait_words(a, voff, nd, vtmp, thr, execmask=None, off=0, sleep=1):
    L = a.label("L_wt")
    sfx = {1: "dword", 2: "dwordx2", 4: "dwordx4"}[nd]
    a(f"s_mov_b32 s{S_CNT}, 0")
    if execmask: a(f"s_mov_b64 exec, {execmask}")
    a(f"{L}:\nglobal_load_{sfx} {vr(vtmp, nd)}, v{voff}, s[{S_FLG}:{S_FLG+1}] offset:{off} sc1\n{timeout()}\ns_waitcnt vmcnt(0)")
    if nd == 2: a(f"v_min_u32 v{vtmp}, v{vtmp}, v{vtmp+1}")
    if nd == 4: a(f"v_min3_u32 v{vtmp}, v{vtmp}, v{vtmp+1}, v{vtmp+2}\nv_min_u32 v{vtmp}, v{vtmp}, v{vtmp+3}")
    a(f"v_cmp_gt_u32 vcc, {thr}, v{vtmp}")
    if sleep:
        L2 = a.label("L_wd")
        a(f"s_cbranch_vccz {L2}\ns_sleep {sleep}\ns_branch {L}\n{L2}:")
    else:
        a(f"s_cbranch_vccnz {L}")
    if execmask: a("s_mov_b64 exec, -1")

def wg_wait(a, voff, nd, vtmp, thr, execmask=None, off=0, sleep=1, pre=""):
    L = a.label("L_wg")
    a(f"s_cmp_lg_u32 s{S_W}, 0\ns_cbranch_scc1 {L}")
    start_barrier_wait(a, vtmp, vtmp + 1)
    a(pre)
    wait_words(a, voff, nd, vtmp, thr, execmask, off, sleep)
    a(f"{L}:\ns_barrier")

def flag_off(d, sidx, base):
    return f"s_and_b32 s{d+1}, s{sidx}, 3\ns_lshl_b32 s{d+1}, s{d+1}, 2\ns_lshr_b32 s{d}, s{sidx}, 2\ns_lshl_b32 s{d}, s{d}, 7\ns_add_u32 s{d}, s{d}, s{d+1}\ns_add_u32 s{d}, s{d}, {base}"

def lines_addr(v, sbase):
    return f"v_lshlrev_b32 v{v}, 7, v{V_L}\nv_add_u32 v{v}, {sbase}, v{v}"

def set_flag(a, soff, val, v0, v1):
    a(f"v_mov_b32 v{v0}, s{soff}\nv_mov_b32 v{v1}, {val}\ns_mov_b64 exec, 1\nglobal_store_dword v{v0}, v{v1}, s[{S_FLG}:{S_FLG+1}] sc1\ns_mov_b64 exec, -1")

def start_barrier_wait(a, v0, v1):
    L = a.label("L_sb"); L2 = a.label("L_sbd")
    a(f"""s_cmp_eq_u32 s{S_OK}, 1
s_cbranch_scc1 {L2}
s_mov_b32 s{S_CNT}, 0
v_mov_b32 v{v0}, 0
{L}:
global_load_dword v{v1}, v{v0}, s[{S_DBG}:{S_DBG+1}] offset:128 sc1
{timeout()}
s_waitcnt vmcnt(0)
v_cmp_ne_u32 vcc, 0x100, v{v1}
s_cbranch_vccnz {L}
s_mov_b32 s{S_OK}, 1
{L2}:""")

def ln_stats(a, s1, s2, m, r, t):
    def rnd(x): return f"v_cvt_pk_bf16_f32 v{x}, v{x}, v{x}\nv_lshlrev_b32 v{x}, 16, v{x}"
    a(f"""v_mul_f32 v{m}, 0x3b000000, v{s1}
v_mul_f32 v{t}, 0x3b000000, v{s2}
v_fma_f32 v{t}, -v{m}, v{m}, v{t}
v_max_f32 v{t}, 0, v{t}
{rnd(t)}
v_add_f32 v{t}, 0x3727c5ac, v{t}
{rnd(t)}
v_sqrt_f32 v{t}, v{t}
{rnd(t)}
v_rcp_f32 v{r}, v{t}
{rnd(m)}""")
```

```python
import sys
from wcommon import *
import chain as ch, t13, t2, t4, t5
NAME = "interleave_layers__spectral_gfnet__memory_aug_recurrent_mem_tr__prompt_kernel"
CHAIN_CFG = dict(k1=0, k2=0, fw=-1, d1=320, dfs=40, sync=1)

def gen(cfg={}):
    a = Asm()
    stop = cfg.get("stop", 99)
    tr = cfg.get("trace")
    def mark(i):
        if tr: a(f"s_memrealtime s[{64+2*i}:{65+2*i}]")
    a(f"""
s_cmp_ge_u32 s2, 256
s_cbranch_scc1 L_end
s_load_dwordx2 s[4:5], s[0:1], {KA_WS}
s_load_dwordx2 s[6:7], s[0:1], {KA_DBG}
s_getreg_b32 s16, hwreg(HW_REG_XCC_ID)
s_and_b32 s16, s16, 15
v_lshrrev_b32 v1, 6, v0
v_readfirstlane_b32 s9, v1
v_and_b32 v0, 63, v0
s_mov_b32 s{S_LAY}, 0
s_waitcnt lgkmcnt(0)""")
    mark(0)
    a(f"""
s_cmp_eq_u32 s9, 0
s_cbranch_scc0 L_notw0
s_and_b32 s17, s2, 127
s_lshl_b32 s17, s17, 11
s_lshr_b32 s18, s2, 7
s_lshl_b32 s18, s18, 27
s_add_u32 s17, s17, s18
s_add_u32 s17, s17, {WS_FLAGS}
v_lshl_add_u32 v2, v0, 4, s17
v_mov_b32 v3, 0
v_mov_b64 v[8:9], 0
v_mov_b64 v[10:11], 0
global_store_dwordx4 v2, v[8:11], s[4:5] sc1
global_store_dwordx4 v2, v[8:11], s[4:5] offset:1024 sc1
v_mov_b32 v4, 1
s_mov_b64 exec, 1
s_mov_b32 s18, 32
s_cmp_eq_u32 s16, {cfg.get("xcc", 0)}
s_cbranch_scc0 L_tick
global_atomic_add v5, v3, v4, s[6:7] sc0
s_waitcnt vmcnt(0)
v_readfirstlane_b32 s18, v5
L_tick:
s_cmp_lt_u32 s18, 32
s_cbranch_scc1 L_role
global_atomic_add v5, v3, v4, s[6:7] offset:64 sc0
s_waitcnt vmcnt(0)
v_readfirstlane_b32 s18, v5
s_sub_u32 s19, 255, s18
s_add_u32 s18, s18, 32
s_cmp_ge_u32 s18, 256
s_cselect_b32 s18, s19, s18
L_role:
v_mov_b32 v5, s18
ds_write_b32 v3, v5
s_mov_b64 exec, -1
s_waitcnt lgkmcnt(0)
L_notw0:
s_barrier
v_mov_b32 v3, 0
ds_read_b32 v5, v3
s_waitcnt lgkmcnt(0)
v_readfirstlane_b32 s8, v5
s_barrier
s_cmp_ge_u32 s8, 256
s_cbranch_scc1 L_end
s_cmp_lt_u32 s8, 32
s_cbranch_scc0 L_worker
""")
    arrive = """s_waitcnt vmcnt(0)
s_barrier
s_cmp_eq_u32 s9, 0
s_cbranch_scc0 {L}
v_mov_b32 v40, 0
v_mov_b32 v41, 1
s_mov_b64 exec, 1
global_atomic_add v40, v41, s[6:7] offset:128
s_mov_b64 exec, -1
{L}:"""
    NEXT = f"s_add_u32 s4, s4, {LSTRIDE}\ns_addc_u32 s5, s5, 0\ns_add_u32 s{S_LAY}, s{S_LAY}, 1"
    def markl(i):
        if tr:
            L = a.label("L_mk"); L2 = a.label("L_mk")
            a(f"s_cmp_eq_u32 s{S_LAY}, 0\ns_cbranch_scc0 {L}\ns_memrealtime s[{64+2*i}:{65+2*i}]\ns_branch {L2}\n{L}:\ns_memrealtime s[{74+2*i}:{75+2*i}]\n{L2}:")
    ccfg = dict(CHAIN_CFG); ccfg.update(cfg.get("chain", {}))
    ch.setup(a)
    ch.init_sentinels(a, "sc1")
    a(arrive.format(L="L_arr0"))
    ch.load_weights(a)
    a(f"""s_mov_b32 s{ch.S_CNT}, 0
v_mov_b32 v40, 0
L_cw0:
global_load_dword v41, v40, s[6:7] offset:128 sc1
global_load_dword v42, v40, s[6:7] offset:64 sc1
s_add_u32 s{ch.S_CNT}, s{ch.S_CNT}, 1
s_cmp_gt_u32 s{ch.S_CNT}, {TMO}
s_cbranch_scc1 L_fail
s_waitcnt vmcnt(0)
v_cmp_ne_u32 vcc, 0x100, v41
s_cbranch_vccnz L_cw0""")
    mark(1)
    a(f"v_cmp_lt_u32 vcc, 0xe0, v42\ns_cbranch_vccnz L_chain_s")
    for mode in ("f", "s"):
        a(f"L_chain_{mode}:")
        c = dict(ccfg); c["stf"] = "" if mode == "f" else "sc1"
        ch.layer_start(a, c)
        markl(2)
        ch.step_loop(a, c, mode)
        markl(3)
        a(f"{NEXT}\ns_cmp_lt_u32 s{S_LAY}, 2\ns_cbranch_scc1 L_chain_{mode}\ns_branch L_done")
    a(f"""L_worker:
s_sub_u32 s{S_C}, s8, 32
v_mov_b32 v{V_L}, v0
v_lshlrev_b32 v{V_L16}, 4, v0
s_mov_b32 s{S_OK}, 0""")
    a(arrive.format(L="L_arr1"))
    t4.params(a); t5.params(a)
    SQ, SG, SSTEP = 60, 61, 62
    a(f"""s_sub_u32 s{SG}, s{S_C}, 132
s_and_b32 s{SQ}, s{SG}, 3
s_lshr_b32 s{SG}, s{SG}, 2
s_mov_b32 s{S_SEG}, s{SG}
s_mov_b32 s{SSTEP}, 23
s_cmp_lt_u32 s{S_C}, 132
s_cbranch_scc1 L_layer""")
    a("L_t1:")
    t13.gen_FT(a, SQ)
    a(f"L_t1l:\ns_cmp_eq_u32 s{S_LAY}, 0\ns_cbranch_scc1 L_t1m")
    wg_wait(a, 2, 4, 8, 1, execmask="0xff", sleep=1, pre=f"s_lshl_b32 s{S_T}, s{S_SEG}, 10\ns_add_u32 s{S_T}, s{S_T}, {FL_R2}\n" + lines_addr(2, f"s{S_T}"))
    a("L_t1m:")
    t13.t1_issue(a)
    t13.t1_compute(a, SQ)
    a(f"s_add_u32 s{S_SEG}, s{S_SEG}, s{SSTEP}\ns_cmp_lt_u32 s{S_SEG}, 64\ns_cbranch_scc1 L_t1l")
    a(f"L_layer:\ns_cmp_ge_u32 s{S_C}, 132\ns_cbranch_scc1 L_row\ns_cmp_gt_u32 s{S_C}, 128\ns_cbranch_scc1 L_q")
    t2.params(a, S_C)
    t4.load_w_issue(a)
    a(f"s_cmp_eq_u32 s{S_LAY}, 0\ns_cbranch_scc0 L_w1")
    t2.issue_w(a)
    a("L_w1:")
    t2.gen_consts(a)
    a(f"s_waitcnt vmcnt(0)\ns_cmp_eq_u32 s{S_LAY}, 0\ns_cbranch_scc0 L_w2")
    t2.finish_w(a); t2.stash_w(a, True)
    a("L_w2:")
    t2.stash_w(a, False)
    t4.load_w_finish(a)
    t4.colsum(a)
    markl(1)
    wg_wait(a, 2, 4, 8, 1, pre=lines_addr(2, FL_T1))
    markl(2)
    t2.run(a, S_C)
    a("s_branch L_t4")
    a("L_row:")
    markl(1)
    t13.gen_FI(a, SQ)
    wg_wait(a, 2, 4, 8, 1, execmask=f"s[{S_T+6}:{S_T+7}]", pre=f"s_mov_b32 s{S_T+6}, -1\ns_mov_b32 s{S_T+7}, 1\n" + lines_addr(2, FL_T2))
    markl(2)
    a(f"s_mov_b32 s{S_SEG}, s{SG}\nL_t3l:")
    t13.t3_task(a, SQ)
    a(f"s_add_u32 s{S_SEG}, s{S_SEG}, 23\ns_cmp_lt_u32 s{S_SEG}, 64\ns_cbranch_scc1 L_t3l")
    a(f"s_cmp_ge_u32 s{S_C}, 192\ns_cbranch_scc1 L_t5\nL_q:")
    t4.load_w_issue(a); a("s_waitcnt vmcnt(0)"); t4.load_w_finish(a); t4.colsum(a)
    a("L_t4:")
    markl(3)
    start_barrier_wait(a, 2, 3)
    a(f"s_cmp_eq_u32 s{t4.S_M}, 1\ns_cbranch_scc1 L_t4v")
    t4.loop(a, False)
    a(f"s_branch L_t5\nL_t4v:")
    t4.loop(a, True)
    a("L_t5:")
    markl(4)
    a(f"s_barrier\ns_cmp_ge_u32 s{S_C}, 208\ns_cbranch_scc1 L_nl")
    start_barrier_wait(a, 2, 3)
    t5.load_wo(a)
    t5.loop(a)
    a("s_barrier\nL_nl:")
    markl(5)
    a(f"""{NEXT}
s_cmp_ge_u32 s{S_LAY}, 2
s_cbranch_scc1 L_wd
s_cmp_lt_u32 s{S_C}, 208
s_cbranch_scc1 L_layer
s_bfe_u32 s{S_SEG}, s{S_C}, 0x20002
s_mov_b32 s{SSTEP}, 4
s_branch L_t1
L_wd:""")
    a("s_add_u32 s8, s8, 32\nL_done:")
    if tr:
        a(f"s_load_dwordx2 s[4:5], s[0:1], {KA_WS}\ns_memrealtime s[88:89]\ns_waitcnt lgkmcnt(0)\ns_lshl_b32 s16, s8, 2\ns_add_u32 s16, s16, s9\ns_lshl_b32 s16, s16, 6\ns_add_u32 s16, s16, {WS_STAMP}\nv_mov_b32 v2, s16")
        for i in range(13): a(f"v_mov_b32 v3, s{64+2*i}\nglobal_store_dword v2, v3, s[4:5] offset:{4*i}")
    a(f"""s_branch L_end
L_fail:
s_mov_b64 exec, 1
v_mov_b32 v2, 0
v_mov_b32 v3, 1
global_atomic_add v2, v3, s[6:7] offset:192
L_end:
""")
    rep = []
    body = a.text(report=rep)
    return body, rep

def full_text(cfg={}):
    body, rep = gen(cfg)
    ref = open("interleave_layers__spectral_gfnet__memory_aug_recurrent_mem_tr__prompt.s.ref").read() if cfg.get("hdr") else ""
    hdr = "".join(l + "\n" for l in ref.split("\n") if l.startswith(";") and "@launch" not in l and "Override" not in l and "grid=ceil" not in l)
    return hdr + "; @launch grid=(256,1,1) block=(256,1,1) lds=163840\n" + HDR + kernel_text(NAME, body)

if __name__ == "__main__":
    t = full_text(dict(hdr=1))
    open("interleave_layers__spectral_gfnet__memory_aug_recurrent_mem_tr__prompt.s", "w").write(t)
    print(len(t), "bytes")
```
